```python
import torch

def _softmax(x, axis=-1):
    return torch.softmax(x, dim=axis)
def _gelu(x):
    return torch.nn.functional.gelu(x, approximate="tanh")
def _silu(x):
    return torch.nn.functional.silu(x)
def _sigmoid(x):
    return torch.sigmoid(x)
def _layernorm(x, axis=-1, eps=1e-5):
    m = x.mean(dim=axis, keepdim=True)
    v = x.var(dim=axis, keepdim=True, unbiased=False)
    return (x - m) / torch.sqrt(v + eps)
def _scatter_add(tgt, idx, src, axis=0):
    return tgt.clone().index_add_(axis, idx, src)
def _segment_sum(src, seg, n):
    out = torch.zeros((n,) + src.shape[1:], dtype=src.dtype)
    return out.index_add_(0, seg, src)
def _pad(x, pw):
    flat = tuple(v for pair in reversed(pw) for v in pair)
    return torch.nn.functional.pad(x, flat)

kernel_name = 'parallel_sum__sliding_local_dilated__mixer_token_mlp__prompt'

def setup_inputs():

    _w = (lambda a: (lambda t: t.to(torch.bfloat16) if t.is_floating_point() else t)(torch.as_tensor(a)))
    def _A_setup():
        B, S, D = 1, 2048, 448
        return {
            "x": _w((lambda *s: torch.randn(*s, dtype=torch.bfloat16) * 0.05)(B, S, D)),
            "wqkv": _w((lambda *s: torch.randn(*s, dtype=torch.bfloat16) * 0.05)(D, 3 * D)),
            "wo": _w((lambda *s: torch.randn(*s, dtype=torch.bfloat16) * 0.05)(D, D)),
        }
    _A_in = _A_setup()

    def _B_setup():
        B, S, D, F = 1, 2048, 448, 1792
        return {
            "x": _w((lambda *s: torch.randn(*s, dtype=torch.bfloat16) * 0.05)(B, S, D)),
            "w1": _w((lambda *s: torch.randn(*s, dtype=torch.bfloat16) * 1.6)(S, F) * (S ** -0.5)),
            "b1": _w((lambda *s: torch.randn(*s, dtype=torch.bfloat16) * 12.8)(F) * 0.02),
            "w2": _w((lambda *s: torch.randn(*s, dtype=torch.bfloat16) * 0.4)(F, S) * (F ** -0.5)),
            "b2": _w((lambda *s: torch.randn(*s, dtype=torch.bfloat16) * 6.4)(S) * 0.02),
        }
    _B_in = _B_setup()

    return {
        "A_x": _A_in["x"],
        "A_wqkv": _A_in["wqkv"],
        "A_wo": _A_in["wo"],
        "B_x": _B_in["x"],
        "B_w1": _B_in["w1"],
        "B_b1": _B_in["b1"],
        "B_w2": _B_in["w2"],
        "B_b2": _B_in["b2"],
    }

def reference(A_x, A_wqkv, A_wo, B_x, B_w1, B_b1, B_w2, B_b2):
    def _A_ref(x, wqkv, wo):
        B, S, D = x.shape
        H = 16; Dh = D // H
        W, dil = 8, 2
        qkv = (lambda x, *d: x.permute(*d))((x @ wqkv).reshape(B, S, 3, H, Dh), 2, 0, 3, 1, 4)
        q, k, v = qkv[0], qkv[1], qkv[2]
        scale = Dh ** -0.5
        pos = torch.arange(S)
        off = torch.arange(W) * dil
        idx = pos[:, None] - off[None, :]
        mask = idx >= 0
        idx_c = torch.where(mask, idx, 0).reshape(-1)
        kg = k[:, :, idx_c, :].reshape(B, H, S, W, Dh)
        vg = v[:, :, idx_c, :].reshape(B, H, S, W, Dh)
        logits = torch.einsum("bhsd,bhswd->bhsw", q, kg) * scale
        logits = torch.where(mask[None, None, :, :], logits, -1e9)
        attn = _softmax(logits, axis=-1)
        o = torch.einsum("bhsw,bhswd->bhsd", attn, vg)
        return (lambda x, *d: x.permute(*d))(o, 0, 2, 1, 3).reshape(B, S, D) @ wo

    def _B_ref(x, w1, b1, w2, b2):
        B, S, D = x.shape
        h = _layernorm(x, axis=-1)
        u = torch.einsum("bsd,sf->bdf", h, w1) + b1
        u = _gelu(u)
        y = torch.einsum("bdf,fs->bds", u, w2) + b2
        return (lambda x, *d: x.permute(*d))(y, 0, 2, 1)

    x = A_x
    xn = _layernorm(x, axis=-1)
    return x + _A_ref(xn, A_wqkv, A_wo) + _B_ref(xn, B_w1, B_b1, B_w2, B_b2)
```

```python
import re

REG_RE = re.compile(r"\b([vas])(\d+)\b|\b([vas])\[(\d+):(\d+)\]|\b(vcc|exec|m0|scc)\b")


def regs_of(tok):
    out = set()
    for m in REG_RE.finditer(tok):
        if m.group(1):
            out.add((m.group(1), int(m.group(2))))
        elif m.group(3):
            for i in range(int(m.group(4)), int(m.group(5)) + 1):
                out.add((m.group(3), i))
        else:
            out.add((m.group(6), 0))
    return out


def split_ops(s):
    ops, depth, cur = [], 0, ""
    for ch in s:
        if ch == "[":
            depth += 1
        if ch == "]":
            depth -= 1
        if ch == "," and depth == 0:
            ops.append(cur.strip())
            cur = ""
        else:
            cur += ch
    if cur.strip():
        ops.append(cur.strip())
    return ops


TRANS = ("v_exp_f32", "v_log_f32", "v_rcp_f32", "v_rsq_f32", "v_sqrt_f32", "v_sin_f32", "v_cos_f32")
NO_DST_SALU = ("s_cmp", "s_waitcnt", "s_barrier", "s_branch", "s_cbranch", "s_endpgm", "s_nop", "s_sleep", "s_setprio",
               "s_bitcmp")


class Ins:
    def __init__(self, text):
        self.text = text
        t = text.split(";")[0].strip()
        self.label = t.endswith(":")
        self.op = ""
        self.w, self.r = set(), set()
        self.kind = None
        if self.label or not t or t.startswith("."):
            return
        parts = t.split(None, 1)
        op = self.op = parts[0]
        rest = parts[1] if len(parts) > 1 else ""
        rest_nm = re.sub(r"\b(op_sel|op_sel_hi|neg_lo|neg_hi|quad_perm):\[[^\]]*\]", "", rest)
        ops = split_ops(rest_nm)
        self.ops = ops
        R = [regs_of(o) for o in ops]
        allr = set().union(*R) if R else set()
        self.dpp = "quad_perm" in rest or "row_" in rest
        if op.startswith("v_mfma"):
            self.kind = "mfma"
            self.w = R[0]
            self.a, self.b, self.c = R[1], R[2], R[3]
            self.r = R[1] | R[2] | R[3]
            self.passes = 8 if "32x32" in op else 4
        elif op.startswith("v_"):
            self.kind = "valu"
            if op.startswith("v_permlane") and "swap" in op:
                self.w = R[0] | R[1]
                self.r = R[0] | R[1]
            elif op.startswith("v_cmp"):
                self.w = R[0]
                self.r = set().union(*R[1:])
            elif "_co_" in op:
                self.w = R[0] | R[1]
                self.r = set().union(*R[2:])
            else:
                self.w = R[0]
                self.r = set().union(*R[1:]) if len(R) > 1 else set()
                if op.startswith(("v_fmac", "v_dot2c", "v_writelane")):
                    self.r |= R[0]
        elif op.startswith("ds_"):
            self.kind = "ds"
            if op.startswith("ds_read"):
                self.w = R[0]
                self.r = set().union(*R[1:])
            else:
                self.r = allr
        elif op.startswith(("buffer_", "global_")):
            self.kind = "vmem"
            self.lds = bool(re.search(r"\blds\b", rest))
            if "load" in op and not self.lds:
                self.w = R[0]
                self.r = set().union(*R[1:])
            else:
                self.r = allr
                if self.lds:
                    self.r = self.r | {("m0", 0)}
            self.wide_store = "store" in op and ("x4" in op or "x3" in op)
            if self.wide_store:
                self.sdata = R[0] if op.startswith("buffer_") else R[1]
        elif op.startswith("s_"):
            self.kind = "salu"
            if op.startswith(NO_DST_SALU):
                self.r = allr
            else:
                self.w = R[0]
                self.r = set().union(*R[1:]) if len(R) > 1 else set()
        else:
            raise ValueError("unknown instr " + text)

    def states(self):
        if self.op == "s_nop":
            return int(self.ops[0], 0) + 1
        return 1 if self.kind else 0


def vec(s):
    return {x for x in s if x[0] in "va"and x[0] != "vcc"}


def sca(s):
    return {x for x in s if x[0] in ("s", "vcc")}


def required(p, c):
    need = 0
    if p.kind == "valu":
        wv, ws = vec(p.w), sca(p.w)
        if c.kind == "mfma" and wv & c.r:
            need = max(need, 2)
        if c.kind == "valu":
            if p.op.startswith(TRANS) and wv & c.r:
                need = max(need, 1)
            if p.op.startswith("v_dot") and wv & (c.r | c.w):
                same = c.op == p.op
                srcs = set().union(*[regs_of(o) for o in c.ops[1:3]])
                if not same or (wv & srcs):
                    need = max(need, 3)
            if c.dpp and wv & c.r:
                need = max(need, 2)
            if c.op.startswith("v_permlane") and wv & c.r:
                need = max(need, 2)
            if c.op.startswith(("v_readlane", "v_readfirstlane")) and wv & vec(c.r):
                need = max(need, 1)
            if ws & sca(c.r):
                need = max(need, 4 if c.op.startswith(("v_readlane", "v_writelane")) else 2)
        if c.kind in ("vmem", "ds") and p.op.startswith("v_dot") and wv & c.r:
            need = max(need, 3)
        if c.kind == "vmem" and ws & sca(c.r):
            need = max(need, 5)
        if c.kind == "salu" and ws & sca(c.r):
            need = max(need, 1)
        if c.op.startswith("s_cbranch_vcc") and ("vcc", 0) in ws:
            need = max(need, 1)
    if p.kind == "salu":
        if ("m0", 0) in p.w and c.kind == "vmem" and c.lds:
            need = max(need, 1)
    if p.kind == "vmem" and p.wide_store:
        if c.kind in ("valu", "mfma", "ds", "vmem") and p.sdata & c.w:
            need = max(need, 2)
    if p.kind == "mfma":
        k = {4: 0, 8: 1}[p.passes]
        if c.kind == "mfma":
            if p.w & (c.a | c.b):
                need = max(need, [8, 12][k])
            if p.w & c.c and not (p.w == c.c and p.passes == c.passes):
                need = max(need, [6, 10][k])
            if p.w & c.w and not (p.w & c.c):
                need = max(need, [8, 12][k])
        elif c.kind in ("valu", "ds", "vmem"):
            if p.w & (c.r | c.w):
                need = max(need, [8, 12][k])
            if c.kind == "valu" and p.c & c.w:
                need = max(need, [3, 7][k])
    return need


def pad_hazards(lines):
    ins = [Ins(t) for t in lines]
    labels = {}
    for i, x in enumerate(ins):
        if x.label:
            labels[x.text.split(":")[0].strip()] = i
    preds_branch = {}
    for i, x in enumerate(ins):
        if x.op.startswith(("s_branch", "s_cbranch")):
            t = labels[x.ops[0]]
            preds_branch.setdefault(t, []).append(i)
    pad = [0] * len(ins)

    def scan(c, i, dist, seen):
        need = 0
        j = i - 1
        while j >= 0 and dist < 20:
            x = ins[j]
            if x.label:
                for b in preds_branch.get(j, []):
                    if (b, dist) not in seen:
                        seen.add((b, dist))
                        need = max(need, scan(c, b + 1, dist, seen))
                k = j - 1
                while k >= 0 and not ins[k].kind and not ins[k].label:
                    k -= 1
                if k >= 0 and ins[k].op in ("s_branch", "s_endpgm"):
                    return need
            elif x.kind:
                need = max(need, required(x, c) - dist)
                dist += x.states() + pad[j]
            j -= 1
        return need

    for i, c in enumerate(ins):
        if c.kind:
            pad[i] = max(0, scan(c, i, 0, set()))
    out = []
    nn = 0
    for i, c in enumerate(ins):
        p = pad[i]
        while p > 0:
            k = min(p, 16)
            out.append(f"    s_nop {k-1}")
            nn += 1
            p -= k
        out.append(c.text)
    return out, nn


class Emit:
    def __init__(self):
        self.lines = []
        self.vm = 0
        self.vm_done = 0
        self.lg = 0
        self.lg_done = 0

    def __call__(self, text):
        seq = None
        for t in text.split("\n"):
            t = t.strip()
            if not t:
                continue
            op = t.split()[0]
            if op.startswith(("buffer_", "global_")):
                if self.vm - self.vm_done >= 63:
                    self.wait_vm(self.vm - 63)
                seq = self.vm
                self.vm += 1
            elif op.startswith("ds_"):
                seq = self.lg
                self.lg += 1
            self.lines.append(t if t.endswith(":") else "    " + t)
        return seq

    def label(self, l):
        self.lines.append(l + ":")

    def wait(self, vm=None, lg=None):
        parts = []
        if vm is not None and vm >= self.vm_done:
            n = self.vm - vm - 1
            assert n <= 63
            parts.append(f"vmcnt({n})")
            self.vm_done = vm + 1
        if lg is not None and lg >= self.lg_done:
            n = self.lg - lg - 1
            if n > 15:
                n = 15
                lg = self.lg - 16
            parts.append(f"lgkmcnt({n})")
            self.lg_done = lg + 1
        if parts:
            self.lines.append("    s_waitcnt " + " ".join(parts))

    def wait_vm(self, seq):
        self.wait(vm=seq)

    def wait_lg(self, seq):
        self.wait(lg=seq)

    def wait_all(self, force=False):
        if force:
            self.lines.append("    s_waitcnt vmcnt(0) lgkmcnt(0)")
            self.vm_done, self.lg_done = self.vm, self.lg
        else:
            self.wait(vm=self.vm - 1 if self.vm else None, lg=self.lg - 1 if self.lg else None)

    def smem_wait(self):
        self.lines.append("    s_waitcnt lgkmcnt(0)")
        self.lg_done = self.lg


class Op:
    def __init__(self, fn, after=()):
        self.fn, self.after, self.seq = fn, list(after), None


class Item:
    def __init__(self, fn, needs=(), lag=0):
        self.fn, self.needs, self.lag, self.done = fn, list(needs), lag, False


def schedule(e, ops, items, D):
    idx = {id(o): i for i, o in enumerate(ops)}
    io = ii = 0
    last_need = -1
    while io < len(ops) or ii < len(items):
        can_op = io < len(ops) and all(a.done for a in ops[io].after)
        if ii < len(items):
            it = items[ii]
            need = max([idx.get(id(o), -1) for o in it.needs], default=-1)
            ref = need if it.needs else last_need
            dist = it.D if hasattr(it, "D") else D
            want_op = io <= ref + dist + it.lag
        else:
            want_op = True
        if can_op and want_op:
            o = ops[io]
            o.seq = o.fn()
            io += 1
        else:
            assert ii < len(items), "deadlock in schedule"
            assert need < io, "item needs an op that cannot be issued"
            seqs = [o.seq for o in it.needs]
            if seqs:
                e.wait_vm(max(seqs))
                last_need = max(last_need, need)
            it.fn()
            it.done = True
            ii += 1
```

```python
import sys, os, math, struct
sys.path.insert(0, os.path.dirname(os.path.abspath(__file__)))
from asmlib import Emit, Op, Item, schedule, pad_hazards

NAME = "parallel_sum__sliding_local_dilated__mixer_token_mlp__prompt"
OPT = dict(stamps=0, D=24, mimic=1, spin=200000)
for a in sys.argv[2:]:
    k, v = a.split("=")
    OPT[k] = int(v)


def f32(x):
    return "0x%08x" % struct.unpack("<I", struct.pack("<f", x))[0]


HF, UF, OF, QKV, FL = 0x000000, 0x200000, 0x400000, 0x600000, 0xC00000
FLH, FLQ, FLU, FLO = FL, FL + 0x10000, FL + 0x20000, FL + 0x30000
STAMP = 0xD00000
WS_BYTES = 0x1000000

SX, SW, SWO, SW1, SW2, SWS, SOUT, SB1, SB2, SDBG = [4 * i for i in range(1, 11)]
def srd(b): return f"s[{b}:{b+3}]"
sWV, sXCD, sJ, sNON = "s44", "s45", "s46", "s47"
sRB, sCB = "s48", "s49"
sFT, sDT = "s50", "s51"
sW2K = "s52"
sT0, sT1, sT2, sT3 = "s53", "s54", "s55", "s56"
sSO = "s57"
sSA = "s58"
sCNT = "s59"
sXC = [f"s{60+i}" for i in range(7)]
sWC = [f"s{67+i}" for i in range(7)]
sONES = "s74"
sHASP2 = "s75"
sST = 96

vLANE = "v1"
vTR = ["v2", "v3", "v4"]
vTP = ["v5", "v6", "v7"]
vD1 = ["v8", "v9"]
vD2 = ["v10", "v11"]
vDO = ["v12", "v13"]
vL16 = "v14"
vH = ["v15", "v16"]
ACC = 32
STG = 96
NSTG = 20
NUNIT = 20

e = Emit()


def vr(b, n=1):
    return f"v{b}" if n == 1 else f"v[{b}:{b+n-1}]"


def ar(b, n=1):
    return f"a{b}" if n == 1 else f"a[{b}:{b+n-1}]"


nstamp = [0]
def stamp(idx):
    if not OPT["stamps"]:
        return
    e(f"s_memrealtime s[{sST}:{sST+1}]")
    e.smem_wait()
    e(f"v_writelane_b32 v31, s{sST}, {idx}")


def stamp_flush():
    if not OPT["stamps"]:
        return
    e(f"s_lshl_b32 {sT0}, s2, 2\ns_add_u32 {sT0}, {sT0}, {sWV}\ns_lshl_b32 {sT0}, {sT0}, 8\ns_add_u32 {sT0}, {sT0}, {STAMP}")
    e(f"v_lshlrev_b32 v30, 2, {vLANE}")
    e(f"buffer_store_dword v31, v30, {srd(SWS)}, {sT0} offen")


lbl_n = [0]
def newlbl(p):
    lbl_n[0] += 1
    return f"L_{p}{lbl_n[0]}"


def spin_until(load_txt, vdst, cmp_txt):
    l0, l1 = newlbl("spin"), newlbl("ok")
    e(cmp_txt)
    e(f"s_cbranch_vccz {l1}")
    e(f"s_mov_b32 {sCNT}, {OPT['spin']}")
    e.label(l0)
    e.lines.append("    " + load_txt)
    e.lines.append("    s_waitcnt vmcnt(0)")
    e(cmp_txt)
    e(f"s_cbranch_vccz {l1}")
    e(f"s_sub_u32 {sCNT}, {sCNT}, 1")
    e(f"s_cbranch_scc0 {l0}")
    e.label(l1)


def nonce_issue(v):
    e(f"v_mov_b32 {v}, 0")
    return e(f"buffer_load_dword {v}, {v}, {srd(SDBG)}, 0 offen sc1")


def nonce_check(v, vt, seq):
    e.wait_vm(seq)
    e(f"v_mov_b32 {vt}, 0")
    spin_until(f"buffer_load_dword {v}, {vt}, {srd(SDBG)}, 0 offen sc1", v, f"v_cmp_eq_u32 vcc, 0, {v}")
    e(f"v_readfirstlane_b32 {sNON}, {v}")


def poll_txt(vdst, vaddr):
    return f"buffer_load_dword {vdst}, {vaddr}, {srd(SWS)}, 0 offen sc1"


def poll_check(vdst, vaddr):
    spin_until(poll_txt(vdst, vaddr), vdst, f"v_cmp_ne_u32 vcc, {sNON}, {vdst}")


def publish(soff, vt0, vt1):
    l = newlbl("nopub")
    e(f"s_cmp_lg_u32 {sWV}, 0")
    e(f"s_cbranch_scc1 {l}")
    e(f"v_mov_b32 {vt0}, 0\nv_mov_b32 {vt1}, {sNON}")
    e("s_mov_b64 exec, 1")
    e.lines.append(f"    buffer_store_dword {vt1}, {vt0}, {srd(SWS)}, {soff} offen sc1")
    e("s_mov_b64 exec, -1")
    e.label(l)


e("s_cmp_ge_u32 s2, 256\ns_cbranch_scc1 L_end")
for b, off in ((SX, 0), (SW, 8), (SWS, 80), (SDBG, 72), (SW1, 32), (SW2, 48), (SWO, 16), (SOUT, 64), (SB1, 40), (SB2, 56)):
    e(f"s_load_dwordx2 s[{b}:{b+1}], s[0:1], {off}")
if OPT["stamps"]:
    e("v_mov_b32 v31, 0")
e(f"v_lshrrev_b32 v17, 6, v0\nv_and_b32 {vLANE}, 63, v0")
e(f"s_and_b32 {sXCD}, s2, 7\ns_lshr_b32 {sJ}, s2, 3")
e(f"v_readfirstlane_b32 {sWV}, v17")
for b, n in ((SX, 1835008), (SW, 448 * 2688), (SWS, WS_BYTES), (SDBG, 256), (SW1, 2048 * 3584), (SW2, 1792 * 4096),
             (SWO, 448 * 896), (SOUT, 1835008), (SB1, 3584), (SB2, 4096)):
    e(f"s_mov_b32 s{b+2}, {n}\ns_mov_b32 s{b+3}, 0x20000")
e(f"s_mul_i32 {sT0}, {sJ}, 37\ns_lshr_b32 {sT0}, {sT0}, 8\ns_mul_i32 {sT1}, {sT0}, 7\ns_sub_u32 {sCB}, {sJ}, {sT1}")
e(f"s_lshl_b32 {sRB}, {sXCD}, 2\ns_add_u32 {sRB}, {sRB}, {sT0}")
e(f"s_lshl_b32 {sW2K}, {sWV}, 11")
e(f"v_lshlrev_b32 {vL16}, 4, {vLANE}")
e.smem_wait()
stamp(0)
e(f"s_or_b32 {sT0}, s2, {sWV}\ns_cmp_lg_u32 {sT0}, 0\ns_cbranch_scc1 L_nononce")
e("s_memrealtime s[98:99]")
e.smem_wait()
e("s_or_b32 s98, s98, 1\nv_mov_b32 v17, 0\nv_mov_b32 v18, s98\ns_mov_b64 exec, 1")
e.lines.append(f"    buffer_store_dword v18, v17, {srd(SDBG)}, 0 offen sc1")
e("s_mov_b64 exec, -1")
e.label("L_nononce")
e(f"s_cmp_ge_u32 {sJ}, 28\ns_cbranch_scc1 L_helper")

vXG, vW, vXW, vXR, vWR, vHT = "v17", [f"v{18+i}" for i in range(6)], "v24", "v25", ["v26", "v27"], "v28"
XR = 32
FR = 96
e(f"v_lshrrev_b32 v29, 2, v0\nv_mul_u32_u24 {vXG}, 896, v29\nv_and_b32 v30, 3, v0\nv_lshl_add_u32 {vXG}, v30, 4, {vXG}")
e(f"s_mul_i32 {sT0}, {sRB}, 57344")
e(f"s_mov_b32 {sT1}, {sCB}")
for jj in range(7):
    e(f"s_lshl_b32 {sXC[jj]}, {sT1}, 7\ns_add_u32 {sXC[jj]}, {sXC[jj]}, {sT0}\ns_mul_i32 {sWC[jj]}, {sT1}, 172032")
    if jj < 6:
        e(f"s_add_u32 {sT1}, {sT1}, 1\ns_cmp_eq_u32 {sT1}, 7\ns_cselect_b32 {sT1}, 0, {sT1}")
xl = []
for i in range(14):
    xl.append(e(f"buffer_load_dwordx4 {vr(XR+4*i,4)}, {vXG}, {srd(SX)}, {sXC[i//2]} offen offset:{64*(i%2)}"))
vROW, vCOL = "v208", "v209"
e(f"v_lshrrev_b32 v210, 5, {vLANE}\nv_bfe_u32 v211, {vLANE}, 2, 2\nv_lshl_add_u32 {vROW}, v210, 2, v211")
e(f"v_bfe_u32 v212, {vLANE}, 4, 1\nv_lshlrev_b32 {vCOL}, 4, v30\nv_lshl_add_u32 {vCOL}, v212, 6, {vCOL}")
e(f"s_mul_i32 {sT0}, {sWV}, {16*2688}\ns_mul_i32 {sT1}, {sCB}, 384\ns_add_u32 {sT0}, {sT0}, {sT1}")
e(f"v_mul_u32_u24 {vW[0]}, 2688, {vROW}\nv_add3_u32 {vW[0]}, {vW[0]}, {vCOL}, {sT0}")
for p in range(1, 6):
    e(f"v_add_u32 {vW[p]}, {(p//3)*8*2688 + (p%3)*128}, {vW[0]}")
e(f"s_mul_i32 {sT2}, {sWV}, 6144")


def w_chunk_piece(c, p):
    e(f"s_add_u32 m0, {sT2}, {65536 + (c % 4) * 24576 + p * 1024}")
    return e(f"buffer_load_dwordx4 {vW[p]}, {srd(SW)}, {sWC[c]} offen lds")


wl = {}
for c in range(4):
    for p in range(6):
        wl[c] = w_chunk_piece(c, p)
nonce_seq = None
e(f"v_mul_u32_u24 {vXW}, 1056, v30\nv_lshl_add_u32 {vXW}, v29, 4, {vXW}")
e(f"v_lshlrev_b32 v213, 6, v211\nv_lshl_add_u32 v213, v212, 5, v213\nv_lshl_add_u32 v213, v30, 3, v213")
e(f"s_and_b32 {sT0}, {sWV}, 1\ns_lshl_b32 {sT0}, {sT0}, 9\nv_and_b32 v214, 31, {vLANE}\nv_mul_u32_u24 {vXR}, 1056, v210")
e(f"v_lshl_add_u32 {vXR}, v214, 4, {vXR}\nv_add_u32 {vXR}, {sT0}, {vXR}")
e(f"s_lshr_b32 {sT0}, {sWV}, 1\ns_lshl_b32 {sT0}, {sT0}, 8\ns_add_u32 {sT0}, {sT0}, 65536")
e(f"v_mul_u32_u24 {vWR[0]}, 3072, v210\nv_add3_u32 {vWR[0]}, {vWR[0]}, v213, {sT0}\nv_add_u32 {vWR[1]}, 49152, {vWR[0]}")
e(f"v_bfe_u32 v215, {vLANE}, 1, 1\nv_lshl_add_u32 v215, v212, 1, v215\nv_mul_u32_u24 {vHT}, 1056, v215")
e(f"v_lshl_add_u32 v215, v210, 3, v211\nv_lshl_add_u32 {vHT}, v215, 4, {vHT}\nv_and_b32 v215, 1, {vLANE}")
e(f"v_lshl_add_u32 {vHT}, v215, 3, {vHT}\ns_lshl_b32 {sT0}, {sWV}, 8\nv_add_u32 {vHT}, {sT0}, {vHT}")
e(f"v_lshl_add_u32 {vTR[0]}, v210, 10, v213\nv_add_u32 {vTR[0]}, {sW2K}, {vTR[0]}")
e(f"v_add_u32 {vTR[1]}, 65536, {vTR[0]}\nv_add_u32 {vTR[2]}, 131072, {vTR[0]}")
e(f"v_lshl_add_u32 {vTP[0]}, v210, 9, v213\nv_add_u32 {vTP[0]}, {sW2K}, {vTP[0]}")
e(f"v_add_u32 {vTP[1]}, 65536, {vTP[0]}\nv_add_u32 {vTP[2]}, 131072, {vTP[0]}")
e(f"s_lshr_b32 {sT0}, {sXCD}, 1\ns_mul_i32 {sT0}, {sT0}, 49\ns_and_b32 {sT1}, {sXCD}, 1\ns_mul_i32 {sT3}, {sT1}, 25")
e(f"s_add_u32 {sT0}, {sT0}, {sT3}\ns_add_u32 {sT0}, {sT0}, {sJ}\ns_add_u32 {sT1}, {sT1}, {sJ}")
e(f"s_cmp_lt_u32 {sT1}, 25\ns_cselect_b32 {sHASP2}, 1, 0\ns_min_u32 {sT0}, {sT0}, 195")
e(f"s_mul_i32 {sFT}, {sT0}, 9363\ns_lshr_b32 {sFT}, {sFT}, 16\ns_mul_i32 {sT1}, {sFT}, 7\ns_sub_u32 {sDT}, {sT0}, {sT1}")
e(f"s_mul_i32 {sT0}, {sWV}, {512*3584}\ns_lshl_b32 {sT1}, {sFT}, 7\ns_add_u32 {sT0}, {sT0}, {sT1}")
e(f"s_lshr_b32 {sT1}, {sWV}, 1\ns_lshl_b32 {sT1}, {sT1}, 6\nv_xor_b32 v215, {sT1}, {vCOL}")
e(f"v_mul_u32_u24 {vD1[0]}, 3584, {vROW}\nv_add3_u32 {vD1[0]}, {vD1[0]}, v215, {sT0}\nv_add_u32 {vD1[1]}, {8*3584-1024}, {vD1[0]}")
e(f"s_mul_i32 {sT0}, {sWV}, {448*4096}\ns_lshl_b32 {sT1}, {sRB}, 7\ns_add_u32 {sT0}, {sT0}, {sT1}")
e(f"v_lshlrev_b32 {vD2[0]}, 12, {vROW}\nv_add3_u32 {vD2[0]}, {vD2[0]}, {vCOL}, {sT0}\nv_add_u32 {vD2[1]}, {8*4096-1024}, {vD2[0]}")
e(f"s_mul_i32 {sT0}, {sWV}, {112*896}\ns_lshl_b32 {sT1}, {sCB}, 7\ns_add_u32 {sT0}, {sT0}, {sT1}")
e(f"v_mul_u32_u24 {vDO[0]}, 896, {vROW}\nv_add3_u32 {vDO[0]}, {vDO[0]}, {vCOL}, {sT0}\nv_add_u32 {vDO[1]}, {8*896-1024}, {vDO[0]}")
e(f"s_and_b32 {sT0}, {sWV}, 1\ns_lshl_b32 {sT0}, {sT0}, 10\nv_add_u32 {vH[0]}, {sT0}, {vL16}\nv_xor_b32 {vH[1]}, 1024, {vH[0]}")
e(f"s_mov_b32 {sONES}, 0x3f803f80")
vS, vQ = "v216", "v217"
e(f"v_mov_b32 {vS}, 0\nv_mov_b32 {vQ}, 0")
for i in range(14):
    e.wait_vm(xl[i])
    if i == 0:
        stamp(1)
    for k in range(4):
        d = 4 * i + k
        e(f"v_dot2c_f32_bf16 {vS}, {sONES}, v{XR+d}\nv_dot2c_f32_bf16 {vQ}, v{XR+d}, v{XR+d}")
        e(f"v_lshlrev_b32 v{FR+2*d}, 16, v{XR+d}\nv_and_b32 v{FR+2*d+1}, 0xffff0000, v{XR+d}")
stamp(2)
nonce_seq = nonce_issue("v29")
for perm in ("[1,0,3,2]", "[2,3,0,1]"):
    e(f"v_add_f32_dpp {vS}, {vS}, {vS} quad_perm:{perm} row_mask:0xf bank_mask:0xf")
    e(f"v_add_f32_dpp {vQ}, {vQ}, {vQ} quad_perm:{perm} row_mask:0xf bank_mask:0xf")
vM, vV, vR1, vB1, vR2, vB2 = "v218", "v219", "v220", "v222", "v224", "v226"
e(f"v_mul_f32 {vM}, {f32(1/448)}, {vS}\nv_mul_f32 {vV}, {f32(1/448)}, {vQ}")
e(f"v_fma_f32 {vV}, -{vM}, {vM}, {vV}\nv_max_f32 {vV}, 0, {vV}")


def rstd(dst, var):
    if OPT["mimic"]:
        e(f"v_cvt_pk_bf16_f32 {dst}, {var}, {var}\nv_and_b32 {dst}, 0xffff0000, {dst}\nv_add_f32 {dst}, {f32(1e-5)}, {dst}")
        e(f"v_cvt_pk_bf16_f32 {dst}, {dst}, {dst}\nv_and_b32 {dst}, 0xffff0000, {dst}\nv_sqrt_f32 {dst}, {dst}")
        e(f"v_cvt_pk_bf16_f32 {dst}, {dst}, {dst}\nv_and_b32 {dst}, 0xffff0000, {dst}\nv_rcp_f32 {dst}, {dst}")
    else:
        e(f"v_add_f32 {dst}, {f32(1e-5)}, {var}\nv_rsq_f32 {dst}, {dst}")


rstd(vR1, vV)
e(f"v_mul_f32 {vV}, {vV}, {vR1}\nv_mul_f32 {vV}, {vV}, {vR1}")
rstd(vR2, vV)
e(f"v_mul_f32 {vR2}, {vR2}, {vR1}\nv_mul_f32 {vB1}, {vM}, {vR1}\nv_mul_f32 {vB2}, {vM}, {vR2}")
HT = 228
for d in range(8):
    e(f"v_pk_fma_f32 {vr(HT+2*d,2)}, {vr(FR+2*d,2)}, v[224:225], v[226:227] op_sel_hi:[1,0,0] neg_lo:[0,0,1] neg_hi:[0,0,1]")
for d in range(8):
    e(f"v_cvt_pk_bf16_f32 v{244+d}, v{HT+2*d}, v{HT+2*d+1}")
e(f"ds_write_b128 {vXW}, v[244:247]\nds_write_b128 {vXW}, v[248:251] offset:{4*1056}")
hr = None
for nt in range(2):
    for rd in range(2):
        hr = e(f"ds_read_b64_tr_b16 {vr(HT+4*nt+2*rd,2)}, {vHT} offset:{nt*4*1056+rd*64}")
e(f"s_lshl_b32 {sT0}, {sCB}, 18\ns_lshl_b32 {sT1}, {sRB}, 13\ns_add_u32 {sT0}, {sT0}, {sT1}\ns_add_u32 {sT0}, {sT0}, {sW2K}")


def xn_part(i):
    for k in range(4):
        d = 4 * i + k
        e(f"v_pk_fma_f32 {vr(FR+2*d,2)}, {vr(FR+2*d,2)}, v[220:221], v[222:223] op_sel_hi:[1,0,0] neg_lo:[0,0,1] neg_hi:[0,0,1]")
    for k in range(4):
        d = 4 * i + k
        e(f"v_cvt_pk_bf16_f32 v{XR+d}, v{FR+2*d}, v{FR+2*d+1}")
    return e(f"ds_write_b128 {vXW}, {vr(XR+4*i,4)} offset:{4*i*1056}")


xn_part(0)
e.wait_lg(hr)
for nt in range(2):
    hst = e(f"buffer_store_dwordx4 {vr(HT+4*nt,4)}, {vL16}, {srd(SWS)}, {sT0} offen offset:{1024*nt} sc1")
for i in range(1, 14):
    xw = xn_part(i)
stamp(3)
BF = [96, 100]
AF = [104, 116]


def p1_reads(c, ks, buf):
    r = [f"ds_read_b128 {vr(BF[buf],4)}, {vXR} offset:{(c*4+ks)*2112}"]
    s = c % 4
    for a in range(3):
        for rd in range(2):
            r.append(f"ds_read_b64_tr_b16 {vr(AF[buf]+4*a+2*rd,2)}, {vWR[s//2]} offset:{(s%2)*24576+ks*6144+a*1024+rd*512}")
    return r


for c in range(7):
    if c == 3:
        nonce_check("v29", "v30", nonce_seq)
        e.wait_vm(hst)
    e.wait(vm=wl[c], lg=e.lg - 1)
    e("s_barrier")
    pend = []
    if 1 <= c <= 3:
        pend = [(c + 3, p) for p in range(6)]
    if c == 3:
        e(f"s_lshl_b32 {sT0}, {sCB}, 5\ns_add_u32 {sT0}, {sT0}, {sRB}\ns_lshl_b32 {sT0}, {sT0}, 7\ns_add_u32 {sT0}, {sT0}, {FLH}")
        publish(sT0, "v29", "v30")
    seqs = [e(t) for t in p1_reads(c, 0, 0)]
    for ks in range(4):
        buf = ks % 2
        nxt = p1_reads(c, ks + 1, 1 - buf) if ks < 3 else []
        nseq = []
        for a in range(3):
            for t in nxt[[0, 3, 5][a]:[3, 5, 7][a]]:
                nseq.append(e(t))
            e.wait_lg(seqs[2 + 2 * a])
            cin = "0" if (c == 0 and ks == 0) else vr(ACC + 16 * a, 16)
            e(f"v_mfma_f32_32x32x16_bf16 {vr(ACC+16*a,16)}, {vr(AF[buf]+4*a,4)}, {vr(BF[buf],4)}, {cin}")
            if pend and a != 1:
                cc, p = pend.pop(0)
                wl[cc] = w_chunk_piece(cc, p)
        seqs = nseq
stamp(4)
e(f"v_lshrrev_b32 v29, 5, {vLANE}\nv_and_b32 v30, 31, {vLANE}\nv_lshlrev_b32 v29, 15, v29\nv_lshl_add_u32 v29, v30, 4, v29")
e(f"s_mul_i32 {sT0}, {sCB}, 24\ns_lshr_b32 {sT1}, {sWV}, 1\ns_lshl_b32 {sT1}, {sT1}, 2\ns_add_u32 {sT0}, {sT0}, {sT1}\ns_lshl_b32 {sT0}, {sT0}, 15")
e(f"s_lshl_b32 {sT1}, {sRB}, 10\ns_add_u32 {sT0}, {sT0}, {sT1}\ns_and_b32 {sT1}, {sWV}, 1\ns_lshl_b32 {sT1}, {sT1}, 9\ns_add_u32 {sT0}, {sT0}, {sT1}")
for a in range(3):
    for k in range(8):
        e(f"v_cvt_pk_bf16_f32 v{128+8*a+k}, v{ACC+16*a+2*k}, v{ACC+16*a+2*k+1}")
    for b in range(2):
        q = 128 + 8 * a + 4 * b
        e(f"v_permlane32_swap_b32 v{q}, v{q+2}\nv_permlane32_swap_b32 v{q+1}, v{q+3}")
        e(f"s_add_u32 {sT1}, {sT0}, {QKV + (8*a+2*b)*32768}")
        qst = e(f"buffer_store_dwordx4 {vr(q,4)}, v29, {srd(SWS)}, {sT1} offen sc1")
e.wait_all()
e("s_barrier")
e(f"s_lshl_b32 {sT0}, {sRB}, 3\ns_add_u32 {sT0}, {sT0}, {sCB}\ns_lshl_b32 {sT0}, {sT0}, 7\ns_add_u32 {sT0}, {sT0}, {FLQ}")
publish(sT0, "v29", "v30")
stamp(5)
e(f"s_cmp_eq_u32 {sHASP2}, 0\ns_cbranch_scc1 L_nop2")

def dma_ops(vd, sr, soff, unit, after, prev_reads):
    def f0():
        for r in prev_reads:
            e.wait_lg(r.lgseq)
        e(f"s_add_u32 m0, {sW2K}, {unit*8192}\ns_mov_b32 {sSO}, {soff}")
        return e(f"buffer_load_dwordx4 {vd[0]}, {srd(sr)}, {sSO} offen lds")
    def f1():
        return e(f"buffer_load_dwordx4 {vd[1]}, {srd(sr)}, {sSO} offen offset:1024 lds")
    return [Op(f0, after), Op(f1)]


def read_item(bases, step, unit, slot, needs):
    it = Item(None, needs)
    def f():
        for t in range(2):
            for rd in range(2):
                it.lgseq = e(f"ds_read_b64_tr_b16 {ar(8*slot+4*t+2*rd,2)}, {bases[unit//8]} offset:{(unit%8)*8192+t*256+rd*step}")
    it.fn = f
    return it


vPOLL, vPA = "v17", "v18"
e(f"s_lshl_b32 {sT0}, {sDT}, 5\ns_lshl_b32 {sT1}, {sWV}, 3\ns_add_u32 {sT0}, {sT0}, {sT1}\ns_lshl_b32 {sT0}, {sT0}, 7\ns_add_u32 {sT0}, {sT0}, {FLH}")
e(f"v_and_b32 {vPA}, 7, {vLANE}\nv_lshlrev_b32 {vPA}, 7, {vPA}\nv_add_u32 {vPA}, {sT0}, {vPA}")
e(f"s_lshl_b32 {sT0}, {sFT}, 7\ns_lshr_b32 {sT1}, {sWV}, 1\ns_lshl_b32 {sT1}, {sT1}, 6\ns_add_u32 {sT0}, {sT0}, {sT1}")
e(f"v_lshrrev_b32 v19, 5, {vLANE}\nv_lshlrev_b32 v19, 3, v19")
e(f"s_lshl_b32 {sSA}, {sDT}, 18\ns_lshl_b32 {sT1}, {sWV}, 16\ns_add_u32 {sSA}, {sSA}, {sT1}")
ops, items = [], []
bias_ops = [Op(lambda j=j: e(f"buffer_load_dwordx2 {vr(20+2*j,2)}, v19, {srd(SB1)}, {sT0} offen offset:{16*j}")) for j in range(4)]
poll_op = Op(lambda: e(poll_txt(vPOLL, vPA)))
def bias_fn():
    for j in range(4):
        for k in range(2):
            e(f"v_lshlrev_b32 v{ACC+4*j+2*k}, 16, v{20+2*j+k}\nv_and_b32 v{ACC+4*j+2*k+1}, 0xffff0000, v{20+2*j+k}")
poll_it = Item(lambda: poll_check(vPOLL, vPA), [poll_op])
poll_it.D = 8
bias_it = Item(bias_fn, bias_ops)
bias_it.D = 8
NK2 = 32
rd_it, mm_it, wops, hops = {}, {}, {}, {}
for i in range(NK2):
    prev = [rd_it[i - NUNIT]] if i >= NUNIT else []
    wops[i] = dma_ops(vD1, SW1, 16 * i * 3584, i % NUNIT, prev, prev)
    rd_it[i] = read_item(vTR, 512, i % NUNIT, i, wops[i])
    def hload(i, nt):
        def f():
            if nt == 0 and i % 2 == 0 and i > 0:
                e(f"s_add_u32 {sSA}, {sSA}, 4096")
            return e(f"buffer_load_dwordx4 {vr(STG+8*(i%NSTG)+4*nt,4)}, {vH[nt]}, {srd(SWS)}, {sSA} offen offset:{2048*(i%2)} sc1")
        return f
    aft = [poll_it] + ([mm_it[i - NSTG][-1]] if i >= NSTG else [])
    hops[i] = [Op(hload(i, 0), aft), Op(hload(i, 1))]
    mm_it[i] = []
    for q, (mt, nt) in enumerate(((0, 0), (1, 0), (0, 1), (1, 1))):
        def f(i=i, mt=mt, nt=nt):
            e.wait_lg(rd_it[i].lgseq)
            acc = vr(ACC + 16 * (2 * mt + nt), 16)
            cin = "0" if (i == 0 and (mt or nt)) else acc
            e(f"v_mfma_f32_32x32x16_bf16 {acc}, {ar(8*i+4*mt,4)}, {vr(STG+8*(i%NSTG)+4*nt,4)}, {cin}")
        mm_it[i].append(Item(f, [hops[i][nt]], lag=q - nt))
PRE = 4
ops = [poll_op] + bias_ops
for i in range(PRE):
    ops += wops[i]
for i in range(NK2):
    ops += hops[i]
    if i + PRE < NK2:
        ops += wops[i + PRE]
items = [poll_it, bias_it] + [rd_it[i] for i in range(PRE)]
for i in range(NK2):
    items += mm_it[i]
    if i + PRE < NK2:
        items.append(rd_it[i + PRE])
schedule(e, ops, items, OPT["D"])
stamp(6)
SCR = 0
e(f"v_add_u32 v19, {sW2K}, {vL16}")
for q in range(1, 4):
    e(f"v_xor_b32 v{19+q}, {q*2048}, v19")
for q in range(1, 4):
    for k in range(4):
        e(f"ds_write_b128 v19, {vr(ACC+16*q+4*k,4)} offset:{(SCR+2*(q-1)+k//2)*8192+(k%2)*1024}")
e.wait_all()
e("s_barrier")
rs = {}
for k in range(4):
    for q in range(1, 4):
        rs[k, q] = e(f"ds_read_b128 {vr(STG+16*(q-1)+4*k,4)}, v{19+q} offset:{(SCR+2*(q-1)+k//2)*8192+(k%2)*1024}")
C0 = -2.0 * math.sqrt(2.0 / math.pi) * math.log2(math.e)
C1 = C0 * 0.044715
e(f"s_mov_b32 s76, {f32(C1)}\nv_mov_b32 v24, {f32(C0)}")
e(f"s_mul_i32 {sT0}, {sDT}, {112*2048}\ns_lshl_b32 {sT1}, {sFT}, 13\ns_add_u32 {sT0}, {sT0}, {sT1}")
e(f"s_lshr_b32 {sT1}, {sWV}, 1\ns_lshl_b32 {sT1}, {sT1}, 12\ns_add_u32 {sT0}, {sT0}, {sT1}\ns_add_u32 {sT0}, {sT0}, {UF}")
G = 160
for k in range(4):
    e.wait_lg(rs[k, 3])
    for h2 in range(2):
        a = ACC + 4 * k + 2 * h2
        e(f"v_pk_add_f32 {vr(STG+4*k+2*h2,2)}, {vr(STG+4*k+2*h2,2)}, {vr(STG+16+4*k+2*h2,2)}")
        e(f"v_pk_add_f32 {vr(a,2)}, {vr(a,2)}, {vr(STG+32+4*k+2*h2,2)}")
    for h2 in range(2):
        a = ACC + 4 * k + 2 * h2
        e(f"v_pk_add_f32 {vr(a,2)}, {vr(a,2)}, {vr(STG+4*k+2*h2,2)}")
    R = range(4)
    for i in R: e(f"v_mul_f32 v{G+i}, v{ACC+4*k+i}, v{ACC+4*k+i}")
    for i in R: e(f"v_fma_f32 v{G+i}, v{G+i}, s76, v24")
    for i in R: e(f"v_mul_f32 v{G+i}, v{G+i}, v{ACC+4*k+i}")
    for i in R: e(f"v_exp_f32 v{G+i}, v{G+i}")
    for i in R: e(f"v_add_f32 v{G+i}, 1.0, v{G+i}")
    for i in R: e(f"v_rcp_f32 v{G+i}, v{G+i}")
    for i in R: e(f"v_mul_f32 v{G+i}, v{G+i}, v{ACC+4*k+i}")
    e(f"v_cvt_pk_bf16_f32 v{G+8+2*k}, v{G}, v{G+1}\nv_cvt_pk_bf16_f32 v{G+9+2*k}, v{G+2}, v{G+3}")
    if k % 2 == 1:
        e(f"buffer_store_dwordx4 {vr(G+8+4*(k//2),4)}, {vH[0]}, {srd(SWS)}, {sT0} offen offset:{2048*(k//2)} sc1")
e.wait_all()
e("s_barrier")
e(f"s_lshl_b32 {sT0}, {sDT}, 5\ns_add_u32 {sT0}, {sT0}, {sFT}\ns_lshl_b32 {sT0}, {sT0}, 7\ns_add_u32 {sT0}, {sT0}, {FLU}")
publish(sT0, "v29", "v30")
stamp(7)

e.label("L_p3")
vPO, vPAO, vPU, vPAU = "v17", "v18", "v19", "v20"
e(f"v_and_b32 v21, 7, {vLANE}\nv_min_u32 v21, 6, v21\nv_lshlrev_b32 v21, 7, v21")
e(f"s_lshl_b32 {sT0}, {sXCD}, 10\ns_add_u32 {sT0}, {sT0}, {FLO}\nv_add_u32 {vPAO}, {sT0}, v21")
e(f"s_lshl_b32 {sT0}, {sCB}, 5\ns_mul_i32 {sT1}, {sWV}, 7\ns_add_u32 {sT0}, {sT0}, {sT1}\ns_lshl_b32 {sT0}, {sT0}, 7\ns_add_u32 {sT0}, {sT0}, {FLU}")
e(f"v_add_u32 {vPAU}, {sT0}, v21")
sSOo, sSOu = "s76", "s77"
e(f"s_lshl_b32 {sSOo}, {sRB}, 16\ns_lshl_b32 {sT1}, {sWV}, 14\ns_add_u32 {sSOo}, {sSOo}, {sT1}\ns_add_u32 {sSOo}, {sSOo}, {OF}")
e(f"s_mul_i32 {sSOu}, {sCB}, {112*2048}\ns_mul_i32 {sT1}, {sWV}, {28*2048}\ns_add_u32 {sSOu}, {sSOu}, {sT1}\ns_add_u32 {sSOu}, {sSOu}, {UF}")
vOA, vBA = "v22", "v23"
e(f"v_lshrrev_b32 v24, 3, v0\nv_and_b32 v25, 7, v0\nv_mul_u32_u24 {vOA}, 896, v24\nv_lshl_add_u32 {vOA}, v25, 4, {vOA}\nv_lshlrev_b32 {vBA}, 1, v24")
sOUTO, sOUTO2, sB2O = "s78", "s79", "s80"
e(f"s_mul_i32 {sOUTO}, {sRB}, 57344\ns_lshl_b32 {sT1}, {sCB}, 7\ns_add_u32 {sOUTO}, {sOUTO}, {sT1}\ns_add_u32 {sOUTO2}, {sOUTO}, {32*896}")
e(f"s_lshl_b32 {sB2O}, {sRB}, 7")
NST3 = 18
XRES, BRES = 240, 248
res_ops = [Op(lambda: e(f"buffer_load_dwordx4 {vr(XRES,4)}, {vOA}, {srd(SX)}, {sOUTO} offen")),
           Op(lambda: e(f"buffer_load_dwordx4 {vr(XRES+4,4)}, {vOA}, {srd(SX)}, {sOUTO2} offen")),
           Op(lambda: e(f"buffer_load_ushort v{BRES}, {vBA}, {srd(SB2)}, {sB2O} offen")),
           Op(lambda: e(f"buffer_load_ushort v{BRES+1}, {vBA}, {srd(SB2)}, {sB2O} offen offset:64"))]
WOROW = [0, 16, 24, 40, 56, 72, 80, 96]
NK3 = 36
po_op = Op(lambda: e(poll_txt(vPO, vPAO)))
pu_op = Op(lambda: e(poll_txt(vPU, vPAU)))
po_it = Item(lambda: poll_check(vPO, vPAO), [po_op]); po_it.D = 8
pu_it = Item(lambda: poll_check(vPU, vPAU), [pu_op]); pu_it.D = 8
rd_it, mm_it, wops, aops = {}, {}, {}, {}
for i in range(NK3):
    prev = [rd_it[i - NUNIT]] if i >= NUNIT else []
    isp = i < 8
    if isp:
        wops[i] = dma_ops(vDO, SWO, WOROW[i] * 896, i % NUNIT, prev, prev)
        rd_it[i] = read_item(vTR, 512, i % NUNIT, i % 32, wops[i])
    else:
        wops[i] = dma_ops(vD2, SW2, 16 * (i - 8) * 4096, i % NUNIT, prev, prev)
        rd_it[i] = read_item(vTP, 1024, i % NUNIT, i % 32, wops[i])
    def aload(i, t):
        def f():
            so = sSOo if i < 8 else sSOu
            if t == 0 and i % 2 == 0 and i not in (0, 8):
                e(f"s_add_u32 {so}, {so}, 4096")
            return e(f"buffer_load_dwordx4 {vr(STG+8*(i%NST3)+4*t,4)}, {vL16}, {srd(SWS)}, {so} offen offset:{2048*(i%2)+1024*t} sc1")
        return f
    aft = [po_it if isp else pu_it] + ([mm_it[i - NST3][-1]] if i >= NST3 else [])
    aops[i] = [Op(aload(i, 0), aft), Op(aload(i, 1))]
    mm_it[i] = []
    for q, (tw, ta) in enumerate(((0, 0), (1, 0), (0, 1), (1, 1))):
        def f(i=i, tw=tw, ta=ta):
            e.wait_lg(rd_it[i].lgseq)
            wreg, areg = ar(8 * (i % 32) + 4 * tw, 4), vr(STG + 8 * (i % NST3) + 4 * ta, 4)
            if i < 8:
                mt, nt, A, B = tw, ta, wreg, areg
            else:
                mt, nt, A, B = ta, tw, areg, wreg
            acc = vr(ACC + 16 * (2 * mt + nt), 16)
            cin = "0" if i == 0 else acc
            e(f"v_mfma_f32_32x32x16_bf16 {acc}, {A}, {B}, {cin}")
        mm_it[i].append(Item(f, [aops[i][ta]], lag=q - ta))
ops = list(res_ops)
items = []
for i in range(28):
    ops += wops[i]
    items.append(rd_it[i])
ops.append(po_op)
items.append(po_it)
for i in range(28, 32):
    ops += wops[i]
    items.append(rd_it[i])
for i in range(8):
    ops += aops[i]
ops.append(pu_op)
for i in range(32, 36):
    ops += wops[i]
for i in range(8):
    items += mm_it[i]
items.insert(len(items) - 16, pu_it)
for i in range(32, 36):
    items.append(rd_it[i])
for i in range(8, NK3):
    ops += aops[i]
    items += mm_it[i]
schedule(e, ops, items, OPT["D"])
stamp(8)
WA = 96
e(f"v_and_b32 v24, 31, {vLANE}\nv_lshrrev_b32 v25, 3, v24\nv_and_b32 v26, 7, v24\nv_lshlrev_b32 v{WA}, 13, v25")
e(f"v_lshl_add_u32 v{WA}, v26, 8, v{WA}\nv_lshl_add_u32 v{WA}, v26, 4, v{WA}\nv_add_u32 v{WA}, {sW2K}, v{WA}")
e(f"v_lshrrev_b32 v25, 5, {vLANE}\nv_bfe_u32 v27, {vLANE}, 1, 1\nv_xor_b32 v25, v25, v27\nv_lshl_add_u32 v{WA}, v25, 7, v{WA}")
for p in range(1, 8):
    e(f"v_xor_b32 v{WA+p}, {16*p}, v{WA}")
RA = 104
e(f"v_lshrrev_b32 v24, 3, v0\nv_and_b32 v25, 7, v0\nv_and_b32 v26, 7, v24\nv_xor_b32 v25, v25, v26\nv_lshrrev_b32 v27, 3, v24")
e(f"v_lshlrev_b32 v{RA}, 13, v27\nv_lshl_add_u32 v{RA}, v26, 8, v{RA}\nv_lshl_add_u32 v{RA}, v25, 4, v{RA}")
e(f"v_bfe_u32 v27, v24, 1, 1\nv_lshl_add_u32 v{RA}, v27, 7, v{RA}\nv_xor_b32 v{RA+1}, 128, v{RA}")
for mt in range(2):
    for nt in range(2):
        for j in range(4):
            e(f"ds_write_b128 v{WA+4*mt+j}, {vr(ACC+16*(2*mt+nt)+4*j,4)} offset:{nt*32768}")
e.wait_all()
e("s_barrier")
RD = 112
rs = {}
for it in range(2):
    for rd in range(2):
        for p in range(4):
            rs[it, rd, p] = e(f"ds_read_b128 {vr(RD+32*it+16*rd+4*p,4)}, v{RA+rd} offset:{it*32768+p*2048}")
for it in range(2):
    e(f"v_lshlrev_b32 v{BRES+it}, 16, v{BRES+it}")
    for k in range(4):
        e(f"v_lshlrev_b32 v{ACC+8*it+2*k}, 16, v{XRES+4*it+k}\nv_and_b32 v{ACC+8*it+2*k+1}, 0xffff0000, v{XRES+4*it+k}")
    for k in range(8):
        e(f"v_add_f32 v{ACC+8*it+k}, v{ACC+8*it+k}, v{BRES+it}")
for it in range(2):
    for rd in range(2):
        b = RD + 32 * it + 16 * rd
        a = ACC + 8 * it + 4 * rd
        e.wait_lg(rs[it, rd, 3])
        for h2 in range(2):
            e(f"v_pk_add_f32 {vr(b+2*h2,2)}, {vr(b+2*h2,2)}, {vr(b+4+2*h2,2)}")
            e(f"v_pk_add_f32 {vr(b+8+2*h2,2)}, {vr(b+8+2*h2,2)}, {vr(b+12+2*h2,2)}")
        for h2 in range(2):
            e(f"v_pk_add_f32 {vr(a+2*h2,2)}, {vr(a+2*h2,2)}, {vr(b+2*h2,2)}")
        for h2 in range(2):
            e(f"v_pk_add_f32 {vr(a+2*h2,2)}, {vr(a+2*h2,2)}, {vr(b+8+2*h2,2)}")
        for h2 in range(2):
            e(f"v_cvt_pk_bf16_f32 v{ACC+16+4*it+2*rd+h2}, v{a+2*h2}, v{a+2*h2+1}")
    e(f"buffer_store_dwordx4 {vr(ACC+16+4*it,4)}, {vOA}, {srd(SOUT)}, {[sOUTO, sOUTO2][it]} offen")
stamp(9)
stamp_flush()
e("s_endpgm")

e.label("L_helper")
e.wait_all(force=True)
for r in range(10, 14):
    e(f"v_mov_b32 v{r}, 0")
s = nonce_issue("v29")
nonce_check("v29", "v30", s)
e("s_branch L_attn")

e.label("L_nop2")
e(f"s_cmp_lt_u32 {sJ}, 25\ns_cbranch_scc1 L_p3")
e.label("L_attn")
e.wait_all(force=True)
vTOK, vG = "v17", "v18"
vA, vOST, vVW, vVR = "v19", "v20", "v21", "v22"
vM = ["v24", "v25", "v26", "v27"]
mP, mC0, mC1, mLO, mHI, mI0, mI1 = [f"s[{76+2*i}:{77+2*i}]" for i in range(7)]
sU, sQ, sK, sKH, sO = "s90", "s91", "s92", "s93", "s94"
e(f"v_and_b32 {vTOK}, 15, {vLANE}\nv_lshrrev_b32 {vG}, 4, {vLANE}")
e(f"v_lshrrev_b32 v28, 3, {vLANE}\nv_min_u32 v28, 4, v28\ns_lshl_b32 {sT0}, {sXCD}, 2\ns_sub_u32 {sT0}, {sT0}, 1")
e(f"v_add_u32 v28, {sT0}, v28\nv_max_i32 v28, 0, v28\nv_and_b32 v29, 7, {vLANE}\nv_min_u32 v29, 6, v29")
e(f"v_lshl_add_u32 v28, v28, 3, v29\nv_lshlrev_b32 v28, 7, v28\nv_add_u32 v28, {FLQ}, v28")
ps = e(poll_txt("v29", "v28"))
e(f"v_lshlrev_b32 {vA}, 15, {vG}\nv_lshl_add_u32 {vA}, {vTOK}, 4, {vA}")
e(f"v_lshrrev_b32 v23, 1, {vG}\nv_lshlrev_b32 {vOST}, 11, v23\nv_and_b32 v23, 1, {vG}\nv_lshl_add_u32 {vOST}, v23, 9, {vOST}\nv_lshl_add_u32 {vOST}, {vTOK}, 4, {vOST}")
e(f"s_lshl_b32 {sT0}, {sWV}, 12\nv_add_u32 {vVW}, {sT0}, {vL16}")
e(f"v_and_b32 v23, 3, {vLANE}\nv_lshlrev_b32 {vVR}, 8, v23\nv_lshrrev_b32 v23, 2, {vLANE}\nv_lshl_add_u32 {vVR}, v23, 4, {vVR}\nv_add_u32 {vVR}, {sT0}, {vVR}")
e(f"v_and_b32 v23, 1, {vTOK}\nv_cmp_eq_u32 {mP}, 1, v23\nv_lshl_add_u32 v23, {vG}, 2, v23")
e(f"v_cmp_le_u32 {mC0}, v23, {vTOK}\nv_add_u32 v23, 2, v23\nv_cmp_le_u32 {mC1}, v23, {vTOK}")
e(f"v_mov_b32 v23, 0xffff\nv_mov_b32 v30, 0xffff0000\nv_cndmask_b32 v23, v23, v30, {mP}")
e(f"v_cndmask_b32 {vM[0]}, v23, 0, {mC0}\nv_cndmask_b32 {vM[1]}, v23, 0, {mC1}")
e(f"v_cndmask_b32 {vM[2]}, 0, v23, {mC0}\nv_cndmask_b32 {vM[3]}, 0, v23, {mC1}")
e(f"s_sub_u32 {sU}, {sJ}, 25\ns_lshl_b32 {sU}, {sU}, 2\ns_add_u32 {sU}, {sU}, {sWV}")
e.wait_vm(ps)
poll_check("v29", "v28")
stamp(10)
QR, KR, VR = 96, 104, 116
SR, VT, PR, OR_, OP = 128, 144, 156, 164, 180
TT = 188


def attn_loads():
    e(f"s_and_b32 {sT0}, {sU}, 15\ns_mul_i32 {sT0}, {sT0}, 7\ns_lshr_b32 {sT0}, {sT0}, 1\ns_lshl_b32 {sT0}, {sT0}, 15")
    e(f"s_lshr_b32 {sT1}, {sU}, 4\ns_lshl_b32 {sT3}, {sXCD}, 3\ns_add_u32 {sT1}, {sT1}, {sT3}\ns_lshl_b32 {sT1}, {sT1}, 9")
    e(f"s_add_u32 {sQ}, {sT0}, {sT1}\ns_add_u32 {sQ}, {sQ}, {QKV}")
    e(f"s_cmp_eq_u32 {sT1}, 0\ns_cselect_b32 {sT3}, 0, 256")
    e(f"s_add_u32 {sK}, {sQ}, {56*32768}\ns_sub_u32 {sKH}, {sK}, {sT3}")
    for qt in range(2):
        e(f"buffer_load_dwordx4 {vr(QR+4*qt,4)}, {vA}, {srd(SWS)}, {sQ} offen offset:{256*qt} sc1")
    for base in (KR, VR):
        e(f"buffer_load_dwordx4 {vr(base,4)}, {vA}, {srd(SWS)}, {sKH} offen sc1")
        for kt in range(2):
            e(f"buffer_load_dwordx4 {vr(base+4+4*kt,4)}, {vA}, {srd(SWS)}, {sK} offen offset:{256*kt} sc1")
        if base == KR:
            e(f"s_add_u32 {sK}, {sK}, {56*32768}\ns_add_u32 {sKH}, {sKH}, {56*32768}")


attn_loads()
e.label("L_attn_loop")
e(f"s_bitcmp1_b32 {sU}, 0\ns_cselect_b32 s82, 0xffff, 0\ns_mov_b32 s83, 0\ns_mov_b32 s84, 0\ns_cselect_b32 s85, 0, 0xffff0000")
e(f"s_lshr_b32 {sT1}, {sU}, 4\ns_lshl_b32 {sT3}, {sXCD}, 3\ns_add_u32 {sT1}, {sT1}, {sT3}")
e(f"s_lshr_b32 {sO}, {sT1}, 1\ns_lshl_b32 {sO}, {sO}, 16\ns_and_b32 {sT3}, {sT1}, 1\ns_lshl_b32 {sT3}, {sT3}, 10\ns_add_u32 {sO}, {sO}, {sT3}")
e(f"s_and_b32 {sT3}, {sU}, 15\ns_lshl_b32 {sT3}, {sT3}, 12\ns_add_u32 {sO}, {sO}, {sT3}\ns_add_u32 {sO}, {sO}, {OF}")
e(f"s_cmp_eq_u32 {sT1}, 0\ns_cselect_b64 {mI0}, -1, 0\ns_andn2_b64 {mI1}, {mI0}, {mC1}\ns_andn2_b64 {mI0}, {mI0}, {mC0}")
e.wait_all(force=True)
for kt in range(3):
    e(f"ds_write_b128 {vVW}, {vr(VR+4*kt,4)} offset:{1024*kt}")
for qt in range(2):
    for k in range(4):
        e(f"v_cndmask_b32 v{QR+4*qt+k}, v{QR+4*qt+k}, 0, {mLO if k < 2 else mHI}")
for T in range(2):
    for kt in range(3):
        vtr = e(f"ds_read_b64_tr_b16 {vr(VT+6*T+2*kt,2)}, {vVR} offset:{1024*kt+8*T}")
for qt in range(2):
    for pc in range(2):
        e(f"v_mfma_f32_16x16x32_bf16 {vr(SR+8*qt+4*pc,4)}, {vr(KR+4*(qt+pc),4)}, {vr(QR+4*qt,4)}, 0")
e.wait_lg(vtr)
e(f"s_add_u32 s95, {sU}, 28\ns_min_u32 {sU}, s95, 127")
attn_loads()
SC = (28 ** -0.5) * math.log2(math.e)
e(f"s_mov_b32 {sT0}, {f32(SC)}\nv_mov_b32 v23, {f32(-1e30)}")
Q2 = range(2)
def T(qt, k): return f"v{TT+8*qt+k}"
for qt in Q2:
    Pv, Cv = SR + 8 * qt, SR + 8 * qt + 4
    e(f"v_cndmask_b32 {T(qt,0)}, v{Pv}, v{Pv+1}, {mP}\nv_cndmask_b32 {T(qt,1)}, v{Pv+2}, v{Pv+3}, {mP}")
    e(f"v_cndmask_b32 {T(qt,2)}, v{Cv}, v{Cv+1}, {mP}\nv_cndmask_b32 {T(qt,3)}, v{Cv+2}, v{Cv+3}, {mP}")
    e(f"v_cndmask_b32 {T(qt,0)}, {T(qt,0)}, {T(qt,2)}, {mC0}\nv_cndmask_b32 {T(qt,1)}, {T(qt,1)}, {T(qt,3)}, {mC1}")
e(f"v_cndmask_b32 {T(0,0)}, {T(0,0)}, v23, {mI0}\nv_cndmask_b32 {T(0,1)}, {T(0,1)}, v23, {mI1}")
def xreduce(op, r):
    for sw in ("v_permlane16_swap_b32", "v_permlane32_swap_b32"):
        for qt in Q2: e(f"v_mov_b32 {T(qt,r+1)}, {T(qt,r)}")
        for qt in Q2: e(f"{sw} {T(qt,r)}, {T(qt,r+1)}")
        for qt in Q2: e(f"{op} {T(qt,r)}, {T(qt,r)}, {T(qt,r+1)}")
for qt in Q2: e(f"v_max_f32 {T(qt,2)}, {T(qt,0)}, {T(qt,1)}")
xreduce("v_max_f32", 2)
for qt in Q2:
    e(f"v_sub_f32 {T(qt,0)}, {T(qt,0)}, {T(qt,2)}\nv_sub_f32 {T(qt,1)}, {T(qt,1)}, {T(qt,2)}")
for qt in Q2:
    e(f"v_mul_f32 {T(qt,0)}, {sT0}, {T(qt,0)}\nv_mul_f32 {T(qt,1)}, {sT0}, {T(qt,1)}")
for qt in Q2:
    e(f"v_exp_f32 {T(qt,0)}, {T(qt,0)}\nv_exp_f32 {T(qt,1)}, {T(qt,1)}")
for qt in Q2: e(f"v_add_f32 {T(qt,2)}, {T(qt,0)}, {T(qt,1)}")
xreduce("v_add_f32", 2)
for qt in Q2: e(f"v_rcp_f32 {T(qt,2)}, {T(qt,2)}")
for qt in Q2:
    e(f"v_mul_f32 {T(qt,0)}, {T(qt,0)}, {T(qt,2)}\nv_mul_f32 {T(qt,1)}, {T(qt,1)}, {T(qt,2)}")
for qt in Q2:
    e(f"v_cvt_pk_bf16_f32 {T(qt,0)}, {T(qt,0)}, {T(qt,0)}\nv_cvt_pk_bf16_f32 {T(qt,1)}, {T(qt,1)}, {T(qt,1)}")
for qt in Q2:
    for k in range(4):
        e(f"v_and_b32 v{PR+4*qt+k}, {T(qt,k%2)}, {vM[k]}")
for qt in Q2:
    for Tt in range(2):
        e(f"v_mfma_f32_16x16x32_bf16 {vr(OR_+8*qt+4*Tt,4)}, {vr(VT+6*Tt+2*qt,4)}, {vr(PR+4*qt,4)}, 0")
for qt in Q2:
    for k in range(4):
        e(f"v_cvt_pk_bf16_f32 v{OP+4*qt+k}, v{OR_+8*qt+2*k}, v{OR_+8*qt+2*k+1}")
    for k in range(4):
        e(f"v_cndmask_b32 v{OP+4*qt+k}, v{OP+4*qt+k}, 0, {mLO if k < 2 else mHI}")
    e(f"buffer_store_dwordx4 {vr(OP+4*qt,4)}, {vOST}, {srd(SWS)}, {sO} offen offset:{256*qt} sc1")
e(f"s_cmp_lt_u32 s95, 128\ns_cbranch_scc1 L_attn_loop")
e.wait_all(force=True)
e("s_barrier")
e(f"s_lshl_b32 {sT0}, {sXCD}, 3\ns_add_u32 {sT0}, {sT0}, {sJ}\ns_sub_u32 {sT0}, {sT0}, 25\ns_lshl_b32 {sT0}, {sT0}, 7\ns_add_u32 {sT0}, {sT0}, {FLO}")
publish(sT0, "v29", "v30")
stamp(11)
e(f"s_cmp_lt_u32 {sJ}, 28\ns_cbranch_scc1 L_p3")
stamp_flush()
e.label("L_end")
e("s_endpgm")

body, nn = pad_hazards(e.lines)
ref = open(os.path.join(os.path.dirname(os.path.abspath(__file__)), "..", NAME + ".s.ref")).read().split("\n")
hdr = [l for l in ref if l.startswith(";") and "@launch" not in l and not l.startswith("; Override") and not l.startswith("; grid=ceil")]
out = hdr + ["; @launch grid=(256,1,1) block=(256,1,1) lds=163840",
             "; generated by tools/gen.py (hand-written generator); options: " + " ".join(f"{k}={v}" for k, v in OPT.items()),
             '.amdgcn_target "amdgcn-amd-amdhsa--gfx950"', ".text", f".globl {NAME}_kernel", ".p2align 8",
             f".type {NAME}_kernel,@function", f"{NAME}_kernel:"] + body + [
    '.section .rodata,"a"', ".p2align 6", f".amdhsa_kernel {NAME}_kernel",
    "  .amdhsa_next_free_vgpr 512", "  .amdhsa_next_free_sgpr 102", "  .amdhsa_accum_offset 256",
    "  .amdhsa_group_segment_fixed_size 0", "  .amdhsa_kernarg_size 88", "  .amdhsa_user_sgpr_count 2",
    "  .amdhsa_user_sgpr_kernarg_segment_ptr 1", "  .amdhsa_system_sgpr_workgroup_id_x 1",
    "  .amdhsa_float_denorm_mode_32 3", ".end_amdhsa_kernel", ""]
open(sys.argv[1], "w").write("\n".join(out))
print(f"wrote {sys.argv[1]}: {len(body)} lines, {nn} s_nop pads")
```

```python
import re

REG_RE = re.compile(r"\b([vas])(\d+)\b|\b([vas])\[(\d+):(\d+)\]|\b(vcc|exec|m0|scc)\b")


def regs_of(tok):
    out = set()
    for m in REG_RE.finditer(tok):
        if m.group(1):
            out.add((m.group(1), int(m.group(2))))
        elif m.group(3):
            for i in range(int(m.group(4)), int(m.group(5)) + 1):
                out.add((m.group(3), i))
        else:
            out.add((m.group(6), 0))
    return out


def split_ops(s):
    ops, depth, cur = [], 0, ""
    for ch in s:
        if ch == "[":
            depth += 1
        if ch == "]":
            depth -= 1
        if ch == "," and depth == 0:
            ops.append(cur.strip())
            cur = ""
        else:
            cur += ch
    if cur.strip():
        ops.append(cur.strip())
    return ops


TRANS = ("v_exp_f32", "v_log_f32", "v_rcp_f32", "v_rsq_f32", "v_sqrt_f32", "v_sin_f32", "v_cos_f32")
NO_DST_SALU = ("s_cmp", "s_waitcnt", "s_barrier", "s_branch", "s_cbranch", "s_endpgm", "s_nop", "s_sleep", "s_setprio",
               "s_bitcmp")


class Ins:
    def __init__(self, text):
        self.text = text
        t = text.split(";")[0].strip()
        self.label = t.endswith(":")
        self.op = ""
        self.w, self.r = set(), set()
        self.kind = None
        if self.label or not t or t.startswith("."):
            return
        parts = t.split(None, 1)
        op = self.op = parts[0]
        rest = parts[1] if len(parts) > 1 else ""
        rest_nm = re.sub(r"\b(op_sel|op_sel_hi|neg_lo|neg_hi|quad_perm):\[[^\]]*\]", "", rest)
        ops = split_ops(rest_nm)
        self.ops = ops
        R = [regs_of(o) for o in ops]
        allr = set().union(*R) if R else set()
        self.dpp = "quad_perm" in rest or "row_" in rest
        if op.startswith("v_mfma"):
            self.kind = "mfma"
            self.w = R[0]
            self.a, self.b, self.c = R[1], R[2], R[3]
            self.r = R[1] | R[2] | R[3]
            self.passes = 8 if "32x32" in op else 4
        elif op.startswith("v_"):
            self.kind = "valu"
            if op.startswith("v_permlane") and "swap" in op:
                self.w = R[0] | R[1]
                self.r = R[0] | R[1]
            elif op.startswith("v_cmp"):
                self.w = R[0]
                self.r = set().union(*R[1:])
            elif "_co_" in op:
                self.w = R[0] | R[1]
                self.r = set().union(*R[2:])
            else:
                self.w = R[0]
                self.r = set().union(*R[1:]) if len(R) > 1 else set()
                if op.startswith(("v_fmac", "v_dot2c", "v_writelane")):
                    self.r |= R[0]
        elif op.startswith("ds_"):
            self.kind = "ds"
            if op.startswith("ds_read"):
                self.w = R[0]
                self.r = set().union(*R[1:])
            else:
                self.r = allr
        elif op.startswith(("buffer_", "global_")):
            self.kind = "vmem"
            self.lds = bool(re.search(r"\blds\b", rest))
            if "load" in op and not self.lds:
                self.w = R[0]
                self.r = set().union(*R[1:])
            else:
                self.r = allr
                if self.lds:
                    self.r = self.r | {("m0", 0)}
            self.wide_store = "store" in op and ("x4" in op or "x3" in op)
            if self.wide_store:
                self.sdata = R[0] if op.startswith("buffer_") else R[1]
        elif op.startswith("s_"):
            self.kind = "salu"
            if op.startswith(NO_DST_SALU):
                self.r = allr
            else:
                self.w = R[0]
                self.r = set().union(*R[1:]) if len(R) > 1 else set()
        else:
            raise ValueError("unknown instr " + text)

    def states(self):
        if self.op == "s_nop":
            return int(self.ops[0], 0) + 1
        return 1 if self.kind else 0


def vec(s):
    return {x for x in s if x[0] in "va"and x[0] != "vcc"}


def sca(s):
    return {x for x in s if x[0] in ("s", "vcc")}


def required(p, c):
    need = 0
    if p.kind == "valu":
        wv, ws = vec(p.w), sca(p.w)
        if c.kind == "mfma" and wv & c.r:
            need = max(need, 2)
        if c.kind == "valu":
            if p.op.startswith(TRANS) and wv & c.r:
                need = max(need, 1)
            if p.op.startswith("v_dot") and wv & (c.r | c.w):
                same = c.op == p.op
                srcs = set().union(*[regs_of(o) for o in c.ops[1:3]])
                if not same or (wv & srcs):
                    need = max(need, 3)
            if c.dpp and wv & c.r:
                need = max(need, 2)
            if c.op.startswith("v_permlane") and wv & c.r:
                need = max(need, 2)
            if c.op.startswith(("v_readlane", "v_readfirstlane")) and wv & vec(c.r):
                need = max(need, 1)
            if ws & sca(c.r):
                need = max(need, 4 if c.op.startswith(("v_readlane", "v_writelane")) else 2)
        if c.kind in ("vmem", "ds") and p.op.startswith("v_dot") and wv & c.r:
            need = max(need, 3)
        if c.kind == "vmem" and ws & sca(c.r):
            need = max(need, 5)
        if c.kind == "salu" and ws & sca(c.r):
            need = max(need, 1)
        if c.op.startswith("s_cbranch_vcc") and ("vcc", 0) in ws:
            need = max(need, 1)
    if p.kind == "salu":
        if ("m0", 0) in p.w and c.kind == "vmem" and c.lds:
            need = max(need, 1)
    if p.kind == "vmem" and p.wide_store:
        if c.kind in ("valu", "mfma", "ds", "vmem") and p.sdata & c.w:
            need = max(need, 2)
    if p.kind == "mfma":
        k = {4: 0, 8: 1}[p.passes]
        if c.kind == "mfma":
            if p.w & (c.a | c.b):
                need = max(need, [8, 12][k])
            if p.w & c.c and not (p.w == c.c and p.passes == c.passes):
                need = max(need, [6, 10][k])
            if p.w & c.w and not (p.w & c.c):
                need = max(need, [8, 12][k])
        elif c.kind in ("valu", "ds", "vmem"):
            if p.w & (c.r | c.w):
                need = max(need, [8, 12][k])
            if c.kind == "valu" and p.c & c.w:
                need = max(need, [3, 7][k])
    return need


def pad_hazards(lines):
    ins = [Ins(t) for t in lines]
    labels = {}
    for i, x in enumerate(ins):
        if x.label:
            labels[x.text.split(":")[0].strip()] = i
    preds_branch = {}
    for i, x in enumerate(ins):
        if x.op.startswith(("s_branch", "s_cbranch")):
            t = labels[x.ops[0]]
            preds_branch.setdefault(t, []).append(i)
    pad = [0] * len(ins)

    def scan(c, i, dist, seen):
        need = 0
        j = i - 1
        while j >= 0 and dist < 20:
            x = ins[j]
            if x.label:
                for b in preds_branch.get(j, []):
                    if (b, dist) not in seen:
                        seen.add((b, dist))
                        need = max(need, scan(c, b + 1, dist, seen))
                k = j - 1
                while k >= 0 and not ins[k].kind and not ins[k].label:
                    k -= 1
                if k >= 0 and ins[k].op in ("s_branch", "s_endpgm"):
                    return need
            elif x.kind:
                need = max(need, required(x, c) - dist)
                dist += x.states() + pad[j]
            j -= 1
        return need

    for i, c in enumerate(ins):
        if c.kind:
            pad[i] = max(0, scan(c, i, 0, set()))
    out = []
    nn = 0
    for i, c in enumerate(ins):
        p = pad[i]
        while p > 0:
            k = min(p, 16)
            out.append(f"    s_nop {k-1}")
            nn += 1
            p -= k
        out.append(c.text)
    return out, nn


class Emit:
    def __init__(self):
        self.lines = []
        self.vm = 0
        self.vm_done = 0
        self.lg = 0
        self.lg_done = 0

    def __call__(self, text):
        seq = None
        for t in text.split("\n"):
            t = t.strip()
            if not t:
                continue
            op = t.split()[0]
            if op.startswith(("buffer_", "global_")):
                if self.vm - self.vm_done >= 63:
                    self.wait_vm(self.vm - 63)
                seq = self.vm
                self.vm += 1
            elif op.startswith("ds_"):
                seq = self.lg
                self.lg += 1
            self.lines.append(t if t.endswith(":") else "    " + t)
        return seq

    def label(self, l):
        self.lines.append(l + ":")

    def wait(self, vm=None, lg=None):
        parts = []
        if vm is not None and vm >= self.vm_done:
            n = self.vm - vm - 1
            assert n <= 63
            parts.append(f"vmcnt({n})")
            self.vm_done = vm + 1
        if lg is not None and lg >= self.lg_done:
            n = self.lg - lg - 1
            if n > 15:
                n = 15
                lg = self.lg - 16
            parts.append(f"lgkmcnt({n})")
            self.lg_done = lg + 1
        if parts:
            self.lines.append("    s_waitcnt " + " ".join(parts))

    def wait_vm(self, seq):
        self.wait(vm=seq)

    def wait_lg(self, seq):
        self.wait(lg=seq)

    def wait_all(self, force=False):
        if force:
            self.lines.append("    s_waitcnt vmcnt(0) lgkmcnt(0)")
            self.vm_done, self.lg_done = self.vm, self.lg
        else:
            self.wait(vm=self.vm - 1 if self.vm else None, lg=self.lg - 1 if self.lg else None)

    def smem_wait(self):
        self.lines.append("    s_waitcnt lgkmcnt(0)")
        self.lg_done = self.lg


class Op:
    def __init__(self, fn, after=(), tag=None, cost=None):
        self.fn, self.after, self.seq, self.tag, self.cost = fn, list(after), None, tag, cost


class Item:
    def __init__(self, fn, needs=(), cost=4, D=None, tag=None, issued=(), pace=None, pre=0):
        self.fn, self.needs, self.cost, self.D, self.tag, self.done = fn, list(needs), cost, D, tag, False
        self.issued, self.pace, self.pre = list(issued), pace, pre


def schedule(e, ops, items, D, PACE, log=None):
    idx = {id(o): i for i, o in enumerate(ops)}
    io = ii = 0
    t_since = 10 ** 9
    pace = PACE
    while io < len(ops) or ii < len(items):
        can_op = io < len(ops) and all(a.done for a in ops[io].after)
        if ii < len(items):
            it = items[ii]
            need = max([idx[id(o)] for o in it.needs], default=-1)
            must = max([idx[id(o)] for o in it.issued] + [need])
            dist = D if it.D is None else it.D
            want_op = (need >= 0 and io <= need + dist) or io <= must or t_since >= pace or it.pre > 0
        else:
            want_op = True
        if can_op and want_op:
            o = ops[io]
            o.seq = o.fn()
            if log is not None:
                log.append(o)
            io += 1
            if ii < len(items) and items[ii].pre > 0:
                items[ii].pre -= 1
            t_since = 0 if o.cost is None else pace - o.cost
        else:
            assert ii < len(items), "deadlock in schedule"
            assert must < io, "item needs an op that cannot be issued"
            seqs = [o.seq for o in it.needs]
            if seqs:
                e.wait_vm(max(seqs))
            it.fn()
            it.done = True
            if log is not None:
                log.append(it)
            if it.pace is not None:
                pace = it.pace
            t_since += it.cost
            ii += 1
```

```python
import sys, os, math, struct
sys.path.insert(0, os.path.dirname(os.path.abspath(__file__)))
from asmlib import Emit, Op, Item, schedule, pad_hazards

NAME = "parallel_sum__sliding_local_dilated__mixer_token_mlp__prompt"
OPT = dict(stamps=0, D=11, pace=64, mimic=1, spin=200000, rot=1, rota=0, pfcode=1, pf1=4, pf1nt=1, pfo=1, pf2=1,
           pf2nt=0, outpol=0, npre=32, hb=3, pre=8, pace1=200, pace2=128, qd=8, fill=2, hpad=1280, upad=1280, pace3=64, x1=11, w0=2, bu1=1, bu1nt=1, pf2h=4, w1b=4)
for a in sys.argv[2:]:
    k, v = a.split("=")
    assert k in OPT, k
    OPT[k] = int(v)


def f32(x):
    return "0x%08x" % struct.unpack("<I", struct.pack("<f", x))[0]


HF, UF, OF, QKV, FL = 0x000000, 0x200000, 0x400000, 0x600000, 0xC00000
FLH, FLQ, FLU, FLO = FL, FL + 0x10000, FL + 0x20000, FL + 0x30000
STAMP = 0xD00000
HQ = 65536 + OPT["hpad"]; HD = 4 * HQ + (768 if OPT["hpad"] else 0)
UQ = 57344 + OPT["upad"]; UD = 4 * UQ + (768 if OPT["upad"] else 0)
WS_BYTES = 0x1000000

SX, SW, SWO, SW1, SW2, SWS, SOUT, SB1, SB2, SDBG = [4 * i for i in range(1, 11)]
def srd(b): return f"s[{b}:{b+3}]"
sHD = "s3"
sWV, sXCD, sJ, sNON = "s44", "s45", "s46", "s47"
sRB, sCB = "s48", "s49"
sFT, sDT = "s50", "s51"
sW2K = "s52"
sT0, sT1, sW6K, sT3 = "s53", "s54", "s55", "s56"
sSO = "s57"
sSA = "s58"
sCNT = "s59"
sHB, sUB, sPT, sMSK = "s60", "s61", "s62", "s63"
sL0, sL1, sL2 = "s64", "s65", "s66"
sWC = [f"s{67+i}" for i in range(7)]
sONES = "s74"
sHASP2 = "s75"
sSOo, sOUTO, sOUTO2, sB2O, sGC = "s88", "s89", "s90", "s91", "s92"
sST = 96

vLANE = "v1"
vTR = ["v2", "v3"]
vTP = ["v4", "v5"]
vD1 = ["v6", "v7"]
vD2 = ["v8", "v9"]
vDO = ["v10", "v11"]
vL16 = "v12"
vH = ["v13", "v14"]
vU = ["v15", "v16"]
ACC = 32
STG = 96
NSTG = 16
RING = [17, 18, 19, 8, 9, 10, 11, 12, 13, 14, 15, 16]

e = Emit()
ops, items, log = [], [], []


def vr(b, n=1):
    return f"v{b}" if n == 1 else f"v[{b}:{b+n-1}]"


def ar(b, n=1):
    return f"a{b}" if n == 1 else f"a[{b}:{b+n-1}]"


def stamp(idx):
    if not OPT["stamps"]:
        return
    e(f"s_memrealtime s[{sST}:{sST+1}]\ns_memtime s[{sST+2}:{sST+3}]")
    e.smem_wait()
    e(f"v_writelane_b32 v31, s{sST}, {idx}\nv_writelane_b32 v31, s{sST+2}, {32+idx}")


def stamp_flush():
    if not OPT["stamps"]:
        return
    e(f"s_lshl_b32 {sT0}, s2, 2\ns_add_u32 {sT0}, {sT0}, {sWV}\ns_lshl_b32 {sT0}, {sT0}, 8\ns_add_u32 {sT0}, {sT0}, {STAMP}")
    e(f"v_lshlrev_b32 v30, 2, {vLANE}")
    e(f"buffer_store_dword v31, v30, {srd(SWS)}, {sT0} offen")


lbl_n = [0]
def newlbl(p):
    lbl_n[0] += 1
    return f"L_{p}{lbl_n[0]}"


def txt(text, **kw):
    atomic = kw.pop("atomic", False)
    lines = [t for t in text.split("\n") if t.strip()]
    step = len(lines) if atomic else 4
    last = None
    for i in range(0, len(lines), step):
        chunk = "\n".join(lines[i:i + step])
        last = Item(lambda c=chunk: e(c), cost=4 * len(lines[i:i + step]), **kw)
        items.append(last)
        kw.pop("needs", None)
    return last


def fn(f, **kw):
    it = Item(f, **kw)
    items.append(it)
    return it


def spin_until(load_txt, cmp_txt):
    l0, l1 = newlbl("spin"), newlbl("ok")
    e(cmp_txt)
    e(f"s_cbranch_vccz {l1}")
    e(f"s_mov_b32 {sCNT}, {OPT['spin']}")
    e.label(l0)
    e.lines.append("    " + load_txt)
    e.lines.append("    s_waitcnt vmcnt(0)")
    e(cmp_txt)
    e(f"s_cbranch_vccz {l1}")
    e(f"s_sub_u32 {sCNT}, {sCNT}, 1")
    e(f"s_cbranch_scc0 {l0}")
    e.label(l1)


def nonce_txt(v):
    return f"buffer_load_dword {v}, off, {srd(SDBG)}, 0 sc1"


def nonce_check(v):
    spin_until(nonce_txt(v), f"v_cmp_eq_u32 vcc, 0, {v}")
    e(f"v_readfirstlane_b32 {sNON}, {v}")


def poll_txt(vdst, vaddr):
    return f"buffer_load_dword {vdst}, {vaddr}, {srd(SWS)}, 0 offen sc1"


def poll_check(vdst, vaddr):
    spin_until(poll_txt(vdst, vaddr), f"v_cmp_ne_u32 vcc, {sNON}, {vdst}")


def publish(calc):
    l = newlbl("nopub")
    e(f"s_cmp_lg_u32 {sWV}, 0")
    e(f"s_cbranch_scc1 {l}")
    e(calc)
    e(f"v_mov_b32 v30, {sNON}")
    e("s_mov_b64 exec, 1")
    e.lines.append(f"    buffer_store_dword v30, off, {srd(SWS)}, {sPT} sc1")
    e("s_mov_b64 exec, -1")
    e.label(l)


def flagcalc(hi, sh, lo, base):
    return f"s_lshl_b32 {sPT}, {hi}, {sh}\ns_add_u32 {sPT}, {sPT}, {lo}\ns_lshl_b32 {sPT}, {sPT}, 7\ns_add_u32 {sPT}, {sPT}, {base}"


e("s_cmp_ge_u32 s2, 256\ns_cbranch_scc1 L_end")
e(f"s_load_dwordx2 s[{SX}:{SX+1}], s[0:1], 0\ns_load_dwordx16 s[76:91], s[0:1], 0\ns_load_dwordx4 s[92:95], s[0:1], 64")
e(f"s_load_dwordx2 s[{SWS}:{SWS+1}], s[0:1], 80")
e(f"s_lshr_b32 {sJ}, s2, 3")
if OPT["pfcode"]:
    e("s_getpc_b64 s[98:99]")
    e.label("L_pc")
    e(f"s_lshl_b32 {sT0}, {sJ}, 10\nv_lshrrev_b32 v18, 5, v0\nv_lshl_add_u32 v18, v18, 7, {sT0}")
    e(f"v_min_u32 v18, L_codeend-L_pc-4, v18")
    e("v_mov_b32 v21, s99\nv_add_co_u32 v20, vcc, s98, v18\nv_addc_co_u32 v21, vcc, 0, v21, vcc")
    e("global_load_dword v255, v[20:21], off")
if OPT["stamps"]:
    e("v_mov_b32 v31, 0")
vXG = "v17"
e(f"v_lshrrev_b32 v18, 6, v0\nv_and_b32 {vLANE}, 63, v0")
e(f"s_and_b32 {sXCD}, s2, 7")
e(f"v_readfirstlane_b32 {sWV}, v18")
e(f"s_mul_i32 {sT0}, {sJ}, 37\ns_lshr_b32 {sT0}, {sT0}, 8\ns_mul_i32 {sT1}, {sT0}, 7\ns_sub_u32 {sCB}, {sJ}, {sT1}")
e(f"s_lshl_b32 {sRB}, {sXCD}, 2\ns_add_u32 {sRB}, {sRB}, {sT0}")
e(f"v_lshrrev_b32 v29, 2, v0\nv_mul_u32_u24 {vXG}, 896, v29\nv_and_b32 v30, 3, v0\nv_lshl_add_u32 {vXG}, v30, 4, {vXG}")
e(f"s_mul_i32 {sT0}, {sRB}, 57344\nv_add_u32 {vXG}, {sT0}, {vXG}")
if OPT["rot"]:
    e(f"s_lshl_b32 {sHD}, {sRB}, 1\ns_add_u32 {sHD}, {sHD}, {sCB}\ns_mul_i32 {sT3}, {sHD}, 37\ns_lshr_b32 {sT3}, {sT3}, 8")
    e(f"s_mul_i32 {sT3}, {sT3}, 7\ns_sub_u32 {sHD}, {sHD}, {sT3}")
else:
    e(f"s_mov_b32 {sHD}, {sCB}")
e(f"s_lshl_b32 {sSA}, {sHD}, 7")
e(f"s_mov_b32 s{SX+2}, 1835008\ns_mov_b32 s{SX+3}, 0x20000")
e(f"s_cmp_ge_u32 {sJ}, 28")
e.smem_wait()
e("s_cbranch_scc1 L_helper")
stamp(0)
srdset = ""
for b, src, n in ((SW, 78, 448 * 2688), (SWS, None, WS_BYTES), (SDBG, 94, 256), (SW1, 84, 2048 * 3584), (SW2, 88, 1792 * 4096),
                  (SWO, 80, 448 * 896), (SOUT, 92, 1835008), (SB1, 86, 3584), (SB2, 90, 4096)):
    if src is not None:
        srdset += f"s_mov_b64 s[{b}:{b+1}], s[{src}:{src+1}]\n"
    srdset += f"s_mov_b32 s{b+2}, {n}\ns_mov_b32 s{b+3}, s{SX+3}\n"
srdset += f"s_lshl_b32 {sW2K}, {sWV}, 11\nv_lshlrev_b32 {vL16}, 4, {vLANE}\n"

vW, vXW, vXR, vWR, vHT = [f"v{18+i}" for i in range(6)], "v24", "v25", ["v26", "v27"], "v28"
XR = 32
FR = 96
xl = []
for i in range(14):
    def f(i=i):
        if i % 2 == 0:
            e(f"s_mul_i32 {sWC[i//2]}, {sSA}, 1344")
        s = e(f"buffer_load_dwordx4 {vr(XR+4*i,4)}, {vXG}, {srd(SX)}, {sSA} offen offset:{64*(i%2)}")
        if i % 2 == 1 and i < 13:
            e(f"s_add_u32 {sSA}, {sSA}, 128\ns_cmp_eq_u32 {sSA}, 896\ns_cselect_b32 {sSA}, 0, {sSA}")
        return s
    xl.append(Op(f))
ops += xl
vROW, vCOL = "v208", "v209"
t = f"""v_lshrrev_b32 v210, 5, {vLANE}
v_bfe_u32 v211, {vLANE}, 2, 2
v_lshl_add_u32 {vROW}, v210, 2, v211
v_bfe_u32 v212, {vLANE}, 4, 1
v_lshlrev_b32 {vCOL}, 4, v30
v_lshl_add_u32 {vCOL}, v212, 6, {vCOL}
s_mul_i32 {sT0}, {sWV}, {16*2688}
s_mul_i32 {sT1}, {sCB}, 384
s_add_u32 {sT0}, {sT0}, {sT1}
v_mul_u32_u24 {vW[0]}, 2688, {vROW}
v_add3_u32 {vW[0]}, {vW[0]}, {vCOL}, {sT0}
s_mul_i32 {sW6K}, {sWV}, 6144
"""
for p in range(1, 6):
    t += f"v_add_u32 {vW[p]}, {(p//3)*8*2688 + (p%3)*128}, {vW[0]}\n"
it_wset = txt(srdset + t, atomic=True, issued=xl[:OPT["x1"]], pace=10**8)


def w_chunk(c, after):
    r = []
    for p in range(6):
        def f(p=p):
            e(f"s_add_u32 m0, {sW6K}, {65536 + (c % 4) * 24576 + p * 1024}")
            return e(f"buffer_load_dwordx4 {vW[p]}, {srd(SW)}, {sWC[c]} offen lds")
        r.append(Op(f, after))
    return r


wl = {c: w_chunk(c, [it_wset]) for c in range(4)}
txt(f"""v_mul_u32_u24 {vXW}, 1056, v30
v_lshl_add_u32 {vXW}, v29, 4, {vXW}
v_lshlrev_b32 v213, 6, v211
v_lshl_add_u32 v213, v212, 5, v213
v_lshl_add_u32 v213, v30, 3, v213
s_and_b32 {sT0}, {sWV}, 1
s_lshl_b32 {sT0}, {sT0}, 9
v_and_b32 v214, 31, {vLANE}
v_mul_u32_u24 {vXR}, 1056, v210
v_lshl_add_u32 {vXR}, v214, 4, {vXR}
v_add_u32 {vXR}, {sT0}, {vXR}
s_lshr_b32 {sT0}, {sWV}, 1
s_lshl_b32 {sT0}, {sT0}, 8
s_add_u32 {sT0}, {sT0}, 65536
v_mul_u32_u24 {vWR[0]}, 3072, v210
v_add3_u32 {vWR[0]}, {vWR[0]}, v213, {sT0}
v_add_u32 {vWR[1]}, 49152, {vWR[0]}
v_bfe_u32 v215, {vLANE}, 1, 1
v_lshl_add_u32 v215, v212, 1, v215
v_mul_u32_u24 {vHT}, 1056, v215
v_lshl_add_u32 v215, v210, 3, v211
v_lshl_add_u32 {vHT}, v215, 4, {vHT}
v_and_b32 v215, 1, {vLANE}
v_lshl_add_u32 {vHT}, v215, 3, {vHT}
s_lshl_b32 {sT0}, {sWV}, 8
v_add_u32 {vHT}, {sT0}, {vHT}
s_mov_b32 {sONES}, 0x3f803f80
s_mov_b32 {sMSK}, 0xffff0000
v_mov_b32 v216, 0
v_mov_b32 v217, 0""")
FILL = []
def fill(text, atomic=False):
    lines = [t for t in text.split("\n") if t.strip()]
    if atomic:
        FILL.append("\n".join(lines))
    else:
        FILL.extend(lines)
fill(f"""s_add_u32 {sT0}, {sW2K}, 65536
v_lshl_add_u32 {vTR[0]}, v210, 10, v213
v_add_u32 {vTR[0]}, {sT0}, {vTR[0]}
v_add_u32 {vTR[1]}, 65536, {vTR[0]}
v_lshl_add_u32 {vTP[0]}, v210, 9, v213
v_add_u32 {vTP[0]}, {sT0}, {vTP[0]}
v_add_u32 {vTP[1]}, 65536, {vTP[0]}""")
fill(f"""s_lshr_b32 {sT0}, {sXCD}, 1
s_mul_i32 {sT0}, {sT0}, 49
s_and_b32 {sT1}, {sXCD}, 1
s_mul_i32 {sT3}, {sT1}, 25
s_add_u32 {sT0}, {sT0}, {sT3}
s_add_u32 {sT1}, {sT1}, {sJ}""")
fill(f"""s_cmp_eq_u32 {sT1}, 6
s_cselect_b32 {sHASP2}, 1, 0
s_cselect_b32 {sT3}, 24, 0""", atomic=True)
fill(f"""s_and_b32 {sT1}, {sRB}, 3
s_sub_u32 {sT1}, {sJ}, {sT1}""")
fill(f"""s_cmp_lt_u32 {sCB}, 6
s_cselect_b32 {sHASP2}, 1, {sHASP2}
s_cselect_b32 {sT1}, {sT1}, {sT3}""", atomic=True)
fill(f"""s_add_u32 {sT0}, {sT0}, {sT1}
s_mul_i32 {sFT}, {sT0}, 9363
s_lshr_b32 {sFT}, {sFT}, 16
s_mul_i32 {sT1}, {sFT}, 7
s_sub_u32 {sDT}, {sT0}, {sT1}""")
fill(f"""s_mul_i32 {sT0}, {sWV}, {512*3584}
s_lshl_b32 {sT1}, {sFT}, 7
s_add_u32 {sT0}, {sT0}, {sT1}
s_lshr_b32 {sT1}, {sWV}, 1
s_lshl_b32 {sT1}, {sT1}, 6
v_xor_b32 v215, {sT1}, {vCOL}
v_mul_u32_u24 {vD1[0]}, 3584, {vROW}
v_add3_u32 {vD1[0]}, {vD1[0]}, v215, {sT0}
v_add_u32 {vD1[1]}, {8*3584-1024}, {vD1[0]}""")
if OPT["bu1"]:
    R0 = 64 * OPT["pf1"]
    RPW = -(-(512 - R0) // 28)
    NBU = -(-RPW // 16)
    fill(f"""v_lshrrev_b32 v250, 2, {vLANE}
v_and_b32 v251, 3, {vLANE}
v_lshlrev_b32 v251, 7, v251
s_mul_i32 {sL2}, {sJ}, {RPW}
s_add_u32 {sL2}, {sL2}, {R0}
s_add_u32 {sT1}, {sL2}, {RPW}
s_min_u32 {sT1}, {sT1}, 512
v_add_u32 v250, {sL2}, v250
v_mov_b32 v249, 0x7fffffff""")
    for k in range(NBU):
        fill(f"""v_mul_u32_u24 v{252+k}, 3584, v250
v_add_u32 v{252+k}, v{252+k}, v251""")
        fill(f"""v_cmp_gt_u32 vcc, {sT1}, v250
v_add_u32 v250, 16, v250
v_cndmask_b32 v{252+k}, v249, v{252+k}, vcc""", atomic=True)
    fill(f"""s_mul_i32 {sL2}, {sWV}, {512*3584}
s_mul_i32 {sT1}, {sXCD}, 7
s_lshr_b32 {sT1}, {sT1}, 1
s_lshl_b32 {sT1}, {sT1}, 7
s_add_u32 {sL2}, {sL2}, {sT1}""")
NFILL1 = len(FILL)
fill(f"""s_mul_i32 {sT0}, {sWV}, {448*4096}
s_lshl_b32 {sT1}, {sRB}, 7
s_add_u32 {sT0}, {sT0}, {sT1}
v_lshlrev_b32 {vD2[0]}, 12, {vROW}
v_add3_u32 {vD2[0]}, {vD2[0]}, {vCOL}, {sT0}
v_add_u32 {vD2[1]}, {8*4096-1024}, {vD2[0]}
s_mul_i32 {sT0}, {sWV}, {112*896}
s_lshl_b32 {sT1}, {sCB}, 7
s_add_u32 {sT0}, {sT0}, {sT1}
s_and_b32 {sT1}, {sRB}, {OPT["rota"]}
s_lshl_b32 {sT1}, {sT1}, 6
v_xor_b32 v215, {sT1}, {vCOL}
v_mul_u32_u24 {vDO[0]}, 896, {vROW}
v_add3_u32 {vDO[0]}, {vDO[0]}, v215, {sT0}
v_add_u32 {vDO[1]}, {8*896-1024}, {vDO[0]}
s_lshl_b32 {sT1}, {sT1}, 4
v_add_u32 {vU[0]}, {sT1}, {vL16}
v_xor_b32 {vU[1]}, 1024, {vU[0]}
s_xor_b32 {sT0}, {sWV}, {sFT if OPT["rota"] else 0}
s_and_b32 {sT0}, {sT0}, 1
s_lshl_b32 {sT0}, {sT0}, 10
v_add_u32 {vH[0]}, {sT0}, {vL16}
v_xor_b32 {vH[1]}, 1024, {vH[0]}""")
fn(lambda: None, cost=0, issued=xl + wl[0][:OPT["w0"]], pace=OPT["pace1"])
vS, vQ = "v216", "v217"
for i in range(14):
    t = ""
    for k in range(4):
        d = 4 * i + k
        t += f"v_dot2c_f32_bf16 {vS}, {sONES}, v{XR+d}\nv_dot2c_f32_bf16 {vQ}, v{XR+d}, v{XR+d}\n"
        t += f"v_lshlrev_b32 v{FR+2*d}, 16, v{XR+d}\nv_and_b32 v{FR+2*d+1}, {sMSK}, v{XR+d}\n"
    txt(t, needs=[xl[i]], D=0)
    if i == 0:
        fn(lambda: stamp(1), cost=0)
it_p1 = fn(lambda: stamp(2), cost=0, pace=OPT["pace2"])
nonce_op = Op(lambda: e(nonce_txt("v29")), [it_p1], cost=8)
t = ""
for perm in ("[1,0,3,2]", "[2,3,0,1]"):
    t += f"v_add_f32_dpp {vS}, {vS}, {vS} quad_perm:{perm} row_mask:0xf bank_mask:0xf\n"
    t += f"v_add_f32_dpp {vQ}, {vQ}, {vQ} quad_perm:{perm} row_mask:0xf bank_mask:0xf\n"
vM, vV, vR1, vB1, vR2, vB2 = "v218", "v219", "v220", "v222", "v224", "v226"
t += f"v_mul_f32 {vM}, {f32(1/448)}, {vS}\nv_mul_f32 {vV}, {f32(1/448)}, {vQ}\n"
t += f"v_fma_f32 {vV}, -{vM}, {vM}, {vV}\nv_max_f32 {vV}, 0, {vV}\n"


def rstd(dst, var):
    if OPT["mimic"]:
        return (f"v_cvt_pk_bf16_f32 {dst}, {var}, {var}\nv_and_b32 {dst}, {sMSK}, {dst}\nv_add_f32 {dst}, {f32(1e-5)}, {dst}\n"
                f"v_cvt_pk_bf16_f32 {dst}, {dst}, {dst}\nv_and_b32 {dst}, {sMSK}, {dst}\nv_sqrt_f32 {dst}, {dst}\n"
                f"v_cvt_pk_bf16_f32 {dst}, {dst}, {dst}\nv_and_b32 {dst}, {sMSK}, {dst}\nv_rcp_f32 {dst}, {dst}\n")
    return f"v_add_f32 {dst}, {f32(1e-5)}, {var}\nv_rsq_f32 {dst}, {dst}\n"


t += rstd(vR1, vV)
t += f"v_mul_f32 {vV}, {vV}, {vR1}\nv_mul_f32 {vV}, {vV}, {vR1}\n"
t += rstd(vR2, vV)
t += f"v_mul_f32 {vR2}, {vR2}, {vR1}\nv_mul_f32 {vB1}, {vM}, {vR1}\nv_mul_f32 {vB2}, {vM}, {vR2}\n"
HT = 228
for d in range(8):
    t += f"v_pk_fma_f32 {vr(HT+2*d,2)}, {vr(FR+2*d,2)}, v[224:225], v[226:227] op_sel_hi:[1,0,0] neg_lo:[0,0,1] neg_hi:[0,0,1]\n"
for d in range(8):
    t += f"v_cvt_pk_bf16_f32 v{244+d}, v{HT+2*d}, v{HT+2*d+1}\n"
t += f"s_mul_i32 {sL0}, {sHD}, {HD}\ns_lshl_b32 {sL1}, {sRB}, 13\ns_add_u32 {sL0}, {sL0}, {sL1}\ns_add_u32 {sL0}, {sL0}, {sW2K}\n"
t += f"s_lshr_b32 {sL1}, {sRB}, 3\ns_mul_i32 {sL1}, {sL1}, {HQ-65536}\ns_add_u32 {sL0}, {sL0}, {sL1}\n"
txt(t)
S = {}
def h_stage():
    e(f"ds_write_b128 {vXW}, v[244:247]\nds_write_b128 {vXW}, v[248:251] offset:{4*1056}")
    for nt in range(2):
        for rd in range(2):
            S["hr"] = e(f"ds_read_b64_tr_b16 {vr(HT+4*nt+2*rd,2)}, {vHT} offset:{nt*4*1056+rd*64}")
fn(h_stage, cost=40)


def xn_part(i):
    t = ""
    for k in range(4):
        d = 4 * i + k
        t += f"v_pk_fma_f32 {vr(FR+2*d,2)}, {vr(FR+2*d,2)}, v[220:221], v[222:223] op_sel_hi:[1,0,0] neg_lo:[0,0,1] neg_hi:[0,0,1]\n"
    for k in range(4):
        d = 4 * i + k
        t += f"v_cvt_pk_bf16_f32 v{XR+d}, v{FR+2*d}, v{FR+2*d+1}\n"
    t += f"ds_write_b128 {vXW}, {vr(XR+4*i,4)} offset:{4*i*1056}\n"
    fn(lambda: e(t), cost=56)


xn_part(0)
xn_part(1)
def h_store():
    e.wait_lg(S["hr"])
    for nt in range(2):
        S["hst"] = e(f"buffer_store_dwordx4 {vr(HT+4*nt,4)}, {vL16}, {srd(SWS)}, {sL0} offen offset:{1024*nt} sc1")
fn(h_store, cost=0)
if OPT["stamps"] > 1:
    fn(lambda: stamp(30), cost=0)
for i in range(2, 14):
    xn_part(i)
fn(lambda: stamp(3), cost=0, pace=OPT["pace"])
ops += wl[0] + wl[1] + wl[2] + [nonce_op] + wl[3]

ring_n = [0]
ring_last = {}


def dma_unit(vd, sr, soff, sbase, after, tag=None):
    unit = RING[ring_n[0] % len(RING)]
    ring_n[0] += 1
    prev = [ring_last[unit]] if unit in ring_last else []
    def f0():
        for r in prev:
            e.wait_lg(r.lgseq)
        e(f"s_add_u32 m0, {sW2K}, {unit*8192}")
        e(f"s_add_u32 {sSO}, {sbase}, {soff}" if sbase else f"s_mov_b32 {sSO}, {soff}")
        return e(f"buffer_load_dwordx4 {vd[0]}, {srd(sr)}, {sSO} offen lds")
    def f1():
        return e(f"buffer_load_dwordx4 {vd[1]}, {srd(sr)}, {sSO} offen offset:1024 lds")
    return unit, [Op(f0, list(after) + prev, tag=tag), Op(f1, tag=tag)]


def read_item(bases, step, unit, slot, needs, tag=None):
    it = Item(None, needs, cost=16, tag=tag)
    def f():
        for t in range(2):
            for rd in range(2):
                it.lgseq = e(f"ds_read_b64_tr_b16 {ar(8*slot+4*t+2*rd,2)}, {bases[unit//8-1]} offset:{(unit%8)*8192+t*256+rd*step}")
    it.fn = f
    ring_last[unit] = it
    return it


BF = [96, 100]
AF = [104, 116]


def p1_reads(n):
    c, ks, buf = n // 4, n % 4, n % 2
    r = [f"ds_read_b128 {vr(BF[buf],4)}, {vXR} offset:{n*2112}"]
    s = c % 4
    for a in range(3):
        for rd in range(2):
            r.append(f"ds_read_b64_tr_b16 {vr(AF[buf]+4*a+2*rd,2)}, {vWR[s//2]} offset:{(s%2)*24576+ks*6144+a*1024+rd*512}")
    return r


bar = {}
def barrier_item(c):
    def f():
        if c == OPT["hb"]:
            nonce_check("v29")
            e.wait_vm(S["hst"])
        e.wait_lg(e.lg - 1)
        e("s_barrier")
        if c == OPT["hb"]:
            publish(flagcalc(sHD, 5, sRB, FLH))
        if OPT["stamps"] > 1:
            stamp(22 + c)
    needs = list(wl[c]) if c < 7 else []
    if c == OPT["hb"]:
        needs.append(nonce_op)
    bar[c] = fn(f, needs=needs, D=6, cost=16)


rseq = {}
barrier_item(0)
fn(lambda: rseq.__setitem__(0, [e(t) for t in p1_reads(0)]), cost=28)
vPH, vPHA, vBA1, BIAS = "v184", "v185", "v186", 188
p2set = f"""s_lshl_b32 {sT0}, {sDT}, 5
s_lshl_b32 {sT1}, {sWV}, 3
s_add_u32 {sT0}, {sT0}, {sT1}
s_lshl_b32 {sT0}, {sT0}, 7
s_add_u32 {sT0}, {sT0}, {FLH}
v_and_b32 {vPHA}, 7, {vLANE}
v_lshlrev_b32 {vPHA}, 7, {vPHA}
v_add_u32 {vPHA}, {sT0}, {vPHA}
s_lshl_b32 {sT0}, {sFT}, 7
s_lshr_b32 {sT1}, {sWV}, 1
s_lshl_b32 {sT1}, {sT1}, 6
s_add_u32 {sT0}, {sT0}, {sT1}
v_lshrrev_b32 {vBA1}, 5, {vLANE}
v_lshl_add_u32 {vBA1}, {vBA1}, 3, {sT0}
s_mul_i32 {sHB}, {sDT}, {HD}
s_mul_i32 {sT1}, {sWV}, {HQ}
s_add_u32 {sHB}, {sHB}, {sT1}
"""
fill(p2set)
w1ops, w1rd = {}, {}
W1B = Item(lambda: None, cost=0)
def w1_unit(i, after):
    unit, o = dma_unit(vD1, SW1, 16 * i * 3584, None, after)
    w1ops[i] = o
    w1rd[i] = read_item(vTR, 512, unit, i, o)
for n in range(28):
    c, ks, buf = n // 4, n % 4, n % 2
    if ks == 3:
        barrier_item(c + 1)
        if c + 4 <= 6:
            wl[c + 4] = w_chunk(c + 4, [bar[c + 1]])
            ops += wl[c + 4]
            if c + 4 == 6 and OPT["bu1"]:
                for k in range(NBU):
                    def bu(k=k):
                        assert S["nfill"] >= NFILL1
                        return e(f"buffer_load_dword v{254+k}, v{252+k}, {srd(SW1)}, {sL2} offen{' nt' if OPT['bu1nt'] else ''}")
                    ops.append(Op(bu))
        else:
            for i in range(3 * (c - 3), 3 * (c - 3) + 3):
                w1_unit(i, [bar[c + 1], W1B])
                ops += w1ops[i]
        if c + 1 == OPT["w1b"]:
            items.append(W1B)
    for a in range(3):
        def f(n=n, a=a, buf=buf):
            if n < 27:
                nxt = p1_reads(n + 1)
                for t in nxt[[0, 3, 5][a]:[3, 5, 7][a]]:
                    rseq.setdefault(n + 1, []).append(e(t))
            e.wait_lg(rseq[n][2 + 2 * a])
            cin = "0" if n == 0 else vr(ACC + 16 * a, 16)
            e(f"v_mfma_f32_32x32x16_bf16 {vr(ACC+16*a,16)}, {vr(AF[buf]+4*a,4)}, {vr(BF[buf],4)}, {cin}")
            for _ in range(OPT["fill"] if n < 27 else 1000):
                if FILL:
                    e(FILL.pop(0))
                    S["nfill"] = S.get("nfill", 0) + 1
            if n == 14 and a == 2:
                assert S["nfill"] >= NFILL1
        fn(f, cost=32)
fn(lambda: stamp(4), cost=0)
txt(f"""v_lshrrev_b32 v29, 5, {vLANE}
v_and_b32 v30, 31, {vLANE}
v_lshlrev_b32 v29, 15, v29
v_lshl_add_u32 v29, v30, 4, v29
s_mul_i32 {sL0}, {sCB}, 24
s_lshr_b32 {sT1}, {sWV}, 1
s_lshl_b32 {sT1}, {sT1}, 2
s_add_u32 {sL0}, {sL0}, {sT1}
s_lshl_b32 {sL0}, {sL0}, 15
s_lshl_b32 {sT1}, {sRB}, 10
s_add_u32 {sL0}, {sL0}, {sT1}
s_and_b32 {sT1}, {sWV}, 1
s_lshl_b32 {sT1}, {sT1}, 9
s_add_u32 {sL0}, {sL0}, {sT1}""", atomic=True)
QP = 160
for a in range(3):
    def f(a=a):
        for k in range(8):
            e(f"v_cvt_pk_bf16_f32 v{QP+8*a+k}, v{ACC+16*a+2*k}, v{ACC+16*a+2*k+1}")
        for b in range(2):
            q = QP + 8 * a + 4 * b
            e(f"s_add_u32 {sT1}, {sL0}, {QKV + (8*a+2*b)*32768}")
            e(f"v_permlane32_swap_b32 v{q}, v{q+2}\nv_permlane32_swap_b32 v{q+1}, v{q+3}")
            S["qst"] = e(f"buffer_store_dwordx4 {vr(q,4)}, v29, {srd(SWS)}, {sT1} offen sc1")
    fn(f, cost=0)


def hoist(cands):
    def f():
        pos = items.index(it)
        el = [r for r in cands() if not r.done and all(o.seq is not None for o in r.needs)]
        for r in el:
            items.remove(r)
            r.D = 2
        items[pos + 1:pos + 1] = el
    it = fn(f, cost=0)


fn(lambda: e(f"s_cmp_eq_u32 {sHASP2}, 0\ns_cbranch_scc1 L_nop2"), cost=8)
def q_publish():
    e.wait_vm(S["qst"])
    e("s_barrier")
    publish(flagcalc(sRB, 3, sCB, FLQ))
    stamp(5)

NK2, NPRE = 32, OPT["npre"]
for i in range(12, NK2):
    w1_unit(i, [])
bias_ops = [Op(lambda j=j: e(f"buffer_load_dwordx2 {vr(BIAS+2*j,2)}, {vBA1}, {srd(SB1)}, 0 offen offset:{16*j}"), cost=16) for j in range(4)]
pollH = Op(lambda: e(poll_txt(vPH, vPHA)), cost=8)
stg_n = [0]
stg_last = {}


def act_load(vaddr, pre_txt, so, off, after, tag=None):
    slot = stg_n[0] % NSTG
    stg_n[0] += 1
    def f():
        if pre_txt:
            e(pre_txt)
        return e(f"buffer_load_dwordx4 {vr(STG+4*slot,4)}, {vaddr}, {srd(SWS)}, {so} offen offset:{off} sc1")
    prev = [stg_last[slot]] if slot in stg_last else []
    return slot, Op(f, list(after) + prev, tag=tag)


def mfma_item(acc, A, B, zero, needs, rd, slot):
    def f():
        e.wait_lg(rd.lgseq)
        e(f"v_mfma_f32_32x32x16_bf16 {vr(acc,16)}, {A}, {B}, {'0' if zero else vr(acc,16)}")
    it = Item(f, needs, cost=32)
    stg_last[slot] = it
    return it


for i in range(12, NPRE - 2):
    ops += w1ops[i]
ops += [pollH] + bias_ops + w1ops[NPRE - 2] + w1ops[NPRE - 1]
for i in range(NPRE - 4):
    items.append(w1rd[i])
    if i == 3 + OPT["qd"]:
        fn(q_publish, cost=16)
it_pollH = fn(lambda: (poll_check(vPH, vPHA), stamp(12)), needs=[pollH], D=8, cost=16)
t = ""
for j in range(4):
    for k in range(2):
        t += f"v_lshlrev_b32 v{ACC+4*j+2*k}, 16, v{BIAS+2*j+k}\nv_and_b32 v{ACC+4*j+2*k+1}, 0xffff0000, v{BIAS+2*j+k}\n"
RED = 196
t += f"v_add_u32 v{RED}, {sW2K}, {vL16}\n"
for q in range(1, 4):
    t += f"v_xor_b32 v{RED+q}, {q*2048}, v{RED}\n"
C0 = -2.0 * math.sqrt(2.0 / math.pi) * math.log2(math.e)
C1 = C0 * 0.044715
t += f"v_mov_b32 v186, {f32(C1)}\nv_mov_b32 v187, {f32(C0)}\n"
txt(t, needs=bias_ops)
txt(f"""s_mul_i32 {sL0}, {sDT}, {UD}
s_lshl_b32 {sT1}, {sFT}, 13
s_add_u32 {sL0}, {sL0}, {sT1}
s_mul_i32 {sT1}, {sFT}, 37
s_lshr_b32 {sT1}, {sT1}, 8
s_mul_i32 {sT1}, {sT1}, {UQ-57344}
s_add_u32 {sL0}, {sL0}, {sT1}
s_lshr_b32 {sT1}, {sWV}, 1
s_lshl_b32 {sT1}, {sT1}, 12
s_add_u32 {sL0}, {sL0}, {sT1}
s_add_u32 {sL0}, {sL0}, {UF}""", atomic=True)
for i in range(NPRE - 4, NPRE):
    items.append(w1rd[i])


def red_write(q, k):
    return f"ds_write_b128 v{RED}, {vr(ACC+16*q+4*k,4)} offset:{(2*(q-1)+k//2)*8192+(k%2)*1024}"


p2last = {}
for ps, nt in enumerate((1, 0)):
    for i in range(NK2):
        pre_txt = f"s_add_u32 {sSA}, {sHB}, {i*2048}" if i % 2 == 0 else None
        slot, o = act_load(vH[nt], pre_txt, sSA, 2048 * (i % 2), [it_pollH])
        ops.append(o)
        if ps == 0 and NPRE + i < NK2:
            ops += w1ops[NPRE + i]
        for mt in range(2):
            q = 2 * mt + nt
            m = mfma_item(ACC + 16 * q, ar(8 * i + 4 * mt, 4), vr(STG + 4 * slot, 4), i == 0 and q != 0, [o], w1rd[i], slot)
            items.append(m)
            p2last[i] = m
        if ps == 0 and NPRE + i < NK2:
            items.append(w1rd[NPRE + i])
        if ps == 1 and 4 <= i < 12:
            fn(lambda i=i: e(red_write([1, 3][(i - 4) // 4], (i - 4) % 4)), cost=0)
    fn(lambda ps=ps: stamp([13, 6][ps]), cost=0)

vPO, vPOA, vPU, vPUA, vOA, vBA2 = "v201", "v202", "v203", "v204", "v205", "v206"
XRES, BRES, WA, RA = 208, 216, 220, 228
p3set = f"""v_and_b32 v207, 7, {vLANE}
v_min_u32 v207, 6, v207
v_lshlrev_b32 v207, 7, v207
s_lshl_b32 {sT0}, {sXCD}, 3
s_add_u32 {sT0}, {sT0}, {sWV}
s_lshl_b32 {sT0}, {sT0}, 7
s_add_u32 {sT0}, {sT0}, {FLO}
v_mov_b32 {vPOA}, {sT0}
s_lshl_b32 {sT0}, {sCB}, 5
s_mul_i32 {sT1}, {sWV}, 7
s_add_u32 {sT0}, {sT0}, {sT1}
s_lshl_b32 {sT0}, {sT0}, 7
s_add_u32 {sT0}, {sT0}, {FLU}
v_add_u32 {vPUA}, {sT0}, v207
s_lshl_b32 {sSOo}, {sRB}, 16
s_lshl_b32 {sT1}, {sWV}, 14
s_add_u32 {sSOo}, {sSOo}, {sT1}
s_add_u32 {sSOo}, {sSOo}, {OF}
v_lshrrev_b32 v207, 3, v0
v_and_b32 v218, 7, v0
v_mul_u32_u24 {vOA}, 896, v207
v_lshl_add_u32 {vOA}, v218, 4, {vOA}
v_lshlrev_b32 {vBA2}, 1, v207
s_mul_i32 {sOUTO}, {sRB}, 57344
s_lshl_b32 {sT1}, {sCB}, 7
s_add_u32 {sOUTO}, {sOUTO}, {sT1}
s_add_u32 {sOUTO2}, {sOUTO}, {32*896}
s_lshl_b32 {sB2O}, {sRB}, 7
s_mul_i32 {sUB}, {sCB}, {UD}
s_mul_i32 {sT1}, {sWV}, {UQ}
s_add_u32 {sUB}, {sUB}, {sT1}
s_add_u32 {sUB}, {sUB}, {UF}
"""
it_p3set = Item(lambda: e(p3set), cost=100, tag=3)
items.insert(items.index(it_pollH), it_p3set)
WOROW = [0, 16, 24, 40, 56, 72, 80, 96]
w2ops, w2rd, woops, word = {}, {}, {}, {}
for i in range(28):
    unit, o = dma_unit(vD2, SW2, 16 * i * 4096, None, [it_p3set], tag=3)
    w2ops[i] = o
    w2rd[i] = read_item(vTP, 1024, unit, i, o, tag=3)
    ops += o
for i in range(8):
    unit, o = dma_unit(vDO, SWO, WOROW[i] * 896, None, [], tag=3)
    woops[i] = o
    word[i] = read_item(vTR, 512, unit, 28 + i % 4, o, tag=3)

RB_ = 96 + 64
def rbuf(q, k):
    return (160 + 16 * (q - 1) + 4 * k) if (q, k) < (2, 2) else (232 + 16 * (q - 2) + 4 * k - 8)
def red1():
    for k in range(4):
        e(red_write(2, k))
    e.wait_lg(e.lg - 1)
    e("s_barrier")
    for k in range(4):
        for q in range(1, 4):
            S["r", k, q] = e(f"ds_read_b128 {vr(rbuf(q,k),4)}, v{RED+q} offset:{(2*(q-1)+k//2)*8192+(k%2)*1024}")
fn(red1, cost=300, pre=4, pace=OPT["pace3"])
G = 48
for k in range(4):
    fn(lambda k=k: e.wait_lg(S["r", k, 3]), cost=0)
    t = ""
    for h2 in range(2):
        a = ACC + 4 * k + 2 * h2
        t += f"v_pk_add_f32 {vr(rbuf(1,k)+2*h2,2)}, {vr(rbuf(1,k)+2*h2,2)}, {vr(rbuf(2,k)+2*h2,2)}\n"
        t += f"v_pk_add_f32 {vr(a,2)}, {vr(a,2)}, {vr(rbuf(3,k)+2*h2,2)}\n"
    for h2 in range(2):
        a = ACC + 4 * k + 2 * h2
        t += f"v_pk_add_f32 {vr(a,2)}, {vr(a,2)}, {vr(rbuf(1,k)+2*h2,2)}\n"
    R, H = range(4), range(2)
    a = ACC + 4 * k
    for i in H: t += f"v_pk_mul_f32 {vr(G+2*i,2)}, {vr(a+2*i,2)}, {vr(a+2*i,2)}\n"
    for i in H: t += f"v_pk_fma_f32 {vr(G+2*i,2)}, {vr(G+2*i,2)}, v[186:187], v[186:187] op_sel:[0,0,1] op_sel_hi:[1,0,1]\n"
    for i in H: t += f"v_pk_mul_f32 {vr(G+2*i,2)}, {vr(G+2*i,2)}, {vr(a+2*i,2)}\n"
    for i in R: t += f"v_exp_f32 v{G+i}, v{G+i}\n"
    for i in H: t += f"v_pk_add_f32 {vr(G+2*i,2)}, {vr(G+2*i,2)}, 1.0 op_sel_hi:[1,0]\n"
    for i in R: t += f"v_rcp_f32 v{G+i}, v{G+i}\n"
    for i in H: t += f"v_pk_mul_f32 {vr(G+2*i,2)}, {vr(G+2*i,2)}, {vr(a+2*i,2)}\n"
    t += f"v_cvt_pk_bf16_f32 v{G+8+2*k}, v{G}, v{G+1}\nv_cvt_pk_bf16_f32 v{G+9+2*k}, v{G+2}, v{G+3}\n"
    txt(t)
    if k % 2 == 1:
        fn(lambda k=k: S.__setitem__("ust", e(f"buffer_store_dwordx4 {vr(G+8+4*(k//2),4)}, {vH[0]}, {srd(SWS)}, {sL0} offen offset:{2048*(k//2)} sc1")), cost=0)
fn(lambda: stamp(14), cost=0, pace=OPT["pace"])
hoist(lambda: [w2rd[i] for i in sorted(w2rd)])
JOIN = {}
def u_publish():
    e.wait_vm(S["ust"])
    e("s_barrier")
    publish(flagcalc(sDT, 5, sFT, FLU))
    stamp(7)
    e.label("L_p3join")
    JOIN["n"] = len(log)
fn(u_publish, cost=16, pre=OPT["pre"])

res_ops = [Op(lambda: e(f"buffer_load_dwordx4 {vr(XRES,4)}, {vOA}, {srd(SX)}, {sOUTO} offen"), tag=3),
           Op(lambda: e(f"buffer_load_dwordx4 {vr(XRES+4,4)}, {vOA}, {srd(SX)}, {sOUTO2} offen"), tag=3),
           Op(lambda: e(f"buffer_load_ushort v{BRES}, {vBA2}, {srd(SB2)}, {sB2O} offen"), cost=16, tag=3),
           Op(lambda: e(f"buffer_load_ushort v{BRES+1}, {vBA2}, {srd(SB2)}, {sB2O} offen offset:64"), cost=16, tag=3)]
pollU = Op(lambda: e(poll_txt(vPU, vPUA)), cost=8, tag=3)
pollO = Op(lambda: e(poll_txt(vPO, vPOA)), cost=8, tag=3)
ops += res_ops
for i in range(5):
    ops += woops[i]
ops.append(pollU)
for i in range(5, 8):
    ops += woops[i]
t = f"""v_and_b32 v230, 31, {vLANE}
v_lshrrev_b32 v231, 3, v230
v_and_b32 v230, 7, v230
v_lshlrev_b32 v{WA}, 13, v231
v_lshl_add_u32 v{WA}, v230, 8, v{WA}
v_lshl_add_u32 v{WA}, v230, 4, v{WA}
v_add_u32 v{WA}, {sW2K}, v{WA}
v_lshrrev_b32 v230, 5, {vLANE}
v_bfe_u32 v231, {vLANE}, 1, 1
v_xor_b32 v230, v230, v231
v_lshl_add_u32 v{WA}, v230, 7, v{WA}
s_and_b32 {sL1}, {sRB}, {OPT['rota']}
s_lshl_b32 {sL1}, {sL1}, 6
v_xor_b32 v{WA}, {sL1}, v{WA}
"""
for p in range(1, 8):
    t += f"v_xor_b32 v{WA+p}, {16*p}, v{WA}\n"
t += f"""v_lshrrev_b32 v218, 3, v0
v_and_b32 v219, 7, v0
v_and_b32 v230, 7, v218
v_xor_b32 v219, v219, v230
v_lshrrev_b32 v231, 3, v218
v_lshlrev_b32 v{RA}, 13, v231
v_lshl_add_u32 v{RA}, v230, 8, v{RA}
v_lshl_add_u32 v{RA}, v219, 4, v{RA}
v_bfe_u32 v231, v218, 1, 1
v_lshl_add_u32 v{RA}, v231, 7, v{RA}
v_xor_b32 v{RA+1}, 128, v{RA}
"""
txt(t)
for i in range(28):
    items.append(w2rd[i])
RES = 232
t = ""
for it_ in range(2):
    t += f"v_lshlrev_b32 v{BRES+it_}, 16, v{BRES+it_}\n"
    for k in range(4):
        t += f"v_lshlrev_b32 v{RES+8*it_+2*k}, 16, v{XRES+4*it_+k}\nv_and_b32 v{RES+8*it_+2*k+1}, 0xffff0000, v{XRES+4*it_+k}\n"
    for k in range(8):
        t += f"v_add_f32 v{RES+8*it_+k}, v{RES+8*it_+k}, v{BRES+it_}\n"
txt(t, needs=res_ops)
for i in range(4):
    items.append(word[i])
fn(lambda: stamp(15), cost=0)
it_pollU = fn(lambda: (poll_check(vPU, vPUA), stamp(16)), needs=[pollU], D=6, cost=16)


def u_pass(mt, extra):
    for i in range(28):
        par = i % 2
        pre_txt = f"s_add_u32 {sSA}, {sUB}, {i*2048}" if par == 0 else None
        slot, o = act_load(vU[mt], pre_txt, sSA, 2048 * par, [it_pollU])
        ops.append(o)
        for nt in range(2):
            items.append(mfma_item(ACC + 16 * (2 * mt + nt), vr(STG + 4 * slot, 4), ar(8 * i + 4 * nt, 4), i == 0 and mt == 1, [o], w2rd[i], slot))
        extra(i)


PO = {}
def ex1(i):
    if i == 20:
        ops.append(pollO)
        PO["it"] = fn(lambda: poll_check(vPO, vPOA), needs=[pollO], D=7, cost=16)
u_pass(1, ex1)
fn(lambda: stamp(17), cost=0)
for kk in range(8):
    for nt in range(2):
        pre_txt = f"s_add_u32 {sSOo}, {sSOo}, 4096" if (nt == 0 and kk % 2 == 0 and kk > 0) else None
        slot, o = act_load(vL16, pre_txt, sSOo, 2048 * (kk % 2) + 1024 * nt, [PO["it"]])
        ops.append(o)
        for mt in range(2):
            items.append(mfma_item(ACC + 16 * (2 * mt + nt), ar(8 * (28 + kk % 4) + 4 * mt, 4), vr(STG + 4 * slot, 4), kk == 0 and mt == 0, [o], word[kk], slot))
    if kk < 4:
        items.append(word[kk + 4])
fn(lambda: stamp(18), cost=0)


def out_write(mt, nt, j):
    return f"ds_write_b128 v{WA+4*mt+j}, {vr(ACC+16*(2*mt+nt)+4*j,4)} offset:{nt*32768}"


def ex0(i):
    if 4 <= i < 12:
        fn(lambda: e(out_write(1, (i - 4) // 4, (i - 4) % 4)), cost=0)
u_pass(0, ex0)
schedule(e, ops, items, OPT["D"], OPT["pace"], log)
stamp(8)
for nt in range(2):
    for j in range(4):
        e(out_write(0, nt, j))
e.wait_all()
e("s_barrier")
RD = 96
rs = {}
for it_ in range(2):
    for rd in range(2):
        for p in range(4):
            rs[it_, rd, p] = e(f"ds_read_b128 {vr(RD+32*it_+16*rd+4*p,4)}, v{RA+rd} offset:{it_*32768+p*2048}")
for it_ in range(2):
    for rd in range(2):
        b = RD + 32 * it_ + 16 * rd
        a = RES + 8 * it_ + 4 * rd
        e.wait_lg(rs[it_, rd, 3])
        for h2 in range(2):
            e(f"v_pk_add_f32 {vr(b+2*h2,2)}, {vr(b+2*h2,2)}, {vr(b+4+2*h2,2)}")
            e(f"v_pk_add_f32 {vr(b+8+2*h2,2)}, {vr(b+8+2*h2,2)}, {vr(b+12+2*h2,2)}")
        for h2 in range(2):
            e(f"v_pk_add_f32 {vr(a+2*h2,2)}, {vr(a+2*h2,2)}, {vr(b+2*h2,2)}")
        for h2 in range(2):
            e(f"v_pk_add_f32 {vr(a+2*h2,2)}, {vr(a+2*h2,2)}, {vr(b+8+2*h2,2)}")
        for h2 in range(2):
            e(f"v_cvt_pk_bf16_f32 v{248+4*it_+2*rd+h2}, v{a+2*h2}, v{a+2*h2+1}")
    e(f"buffer_store_dwordx4 {vr(248+4*it_,4)}, {vOA}, {srd(SOUT)}, {[sOUTO, sOUTO2][it_]} offen{['', ' sc1', ' nt'][OPT['outpol']]}")
stamp(9)
stamp_flush()
e("s_endpgm")

e.label("L_helper")
e.vm_done, e.lg_done = e.vm, e.lg
e(srdset)
sHW = sL2
e(f"s_sub_u32 {sHW}, {sJ}, 28\ns_lshl_b32 {sHW}, {sHW}, 2\ns_add_u32 {sHW}, {sHW}, {sWV}")
e(f"s_or_b32 {sT0}, {sXCD}, {sHW}\ns_cmp_lg_u32 {sT0}, 0\ns_cbranch_scc1 L_nononce")
e("s_memrealtime s[98:99]")
e.smem_wait()
e("s_or_b32 s98, s98, 1\nv_mov_b32 v19, s98\ns_mov_b64 exec, 1")
e.lines.append(f"    buffer_store_dword v19, off, {srd(SDBG)}, 0 sc1")
e("s_mov_b64 exec, -1")
e.label("L_nononce")
stamp(0)
if OPT["pf1"]:
    e(f"v_lshrrev_b32 v17, 2, {vLANE}\nv_mul_u32_u24 v17, 3584, v17\nv_and_b32 v19, 3, {vLANE}\nv_lshl_add_u32 v17, v19, 7, v17")
    e(f"s_lshr_b32 {sT1}, {sHW}, 2\ns_lshl_b32 {sT1}, {sT1}, 5\ns_add_u32 {sT1}, {sT1}, {sWV}\ns_mul_i32 {sT1}, {sT1}, {16*3584}")
    e(f"s_mul_i32 {sT3}, {sXCD}, 7\ns_lshr_b32 {sT3}, {sT3}, 1\ns_lshl_b32 {sT3}, {sT3}, 7\ns_add_u32 {sT1}, {sT1}, {sT3}")
    for k in range(OPT["pf1"]):
        e(f"buffer_load_dword v{20+k}, v17, {srd(SW1)}, {sT1} offen{' nt' if OPT['pf1nt'] else ''}\ns_add_u32 {sT1}, {sT1}, {64*3584}")
if OPT["stamps"]:
    e.wait_all(force=True)
    stamp(19)
if OPT["pf2h"]:
    e(f"v_lshrrev_b32 v17, 2, {vLANE}\nv_lshlrev_b32 v17, 12, v17\nv_and_b32 v19, 3, {vLANE}\nv_lshl_add_u32 v17, v19, 7, v17")
    e(f"s_lshr_b32 {sT1}, {sHW}, 2\ns_mul_i32 {sT1}, {sT1}, 28\ns_add_u32 {sT1}, {sT1}, {sWV}\ns_lshl_b32 {sT1}, {sT1}, 16")
    e(f"s_lshl_b32 {sT3}, {sXCD}, 9\ns_add_u32 {sT1}, {sT1}, {sT3}")
    for k in range(OPT["pf2h"]):
        e(f"buffer_load_dword v{240+k}, v17, {srd(SW2)}, {sT1} offen{' nt' if OPT['pf2nt'] else ''}\ns_add_u32 {sT1}, {sT1}, {4*65536}")
    if OPT["stamps"]:
        e.wait_all(force=True)
        stamp(20)
s = e(nonce_txt("v29"))
vTOK, vG = "v17", "v18"
vA, vOST, vVW, vVR = "v2", "v3", "v4", "v5"
vMK = ["v6", "v7", "v8", "v9"]
vNEG, vFA = "v10", "v11"
mP, mC0, mC1, mLO, mHI, mI0, mI1 = [f"s[{76+2*i}:{77+2*i}]" for i in range(7)]
sU, sQ, sK, sV, sO, sSC = "s90", "s91", "s92", "s93", "s94", "s95"
e(f"v_and_b32 {vTOK}, 15, {vLANE}\nv_lshrrev_b32 {vG}, 4, {vLANE}")
e(f"v_lshrrev_b32 {vFA}, 3, {vLANE}\nv_min_u32 {vFA}, 4, {vFA}\ns_lshl_b32 {sT0}, {sXCD}, 2\ns_sub_u32 {sT0}, {sT0}, 1")
e(f"v_add_u32 {vFA}, {sT0}, {vFA}\nv_max_i32 {vFA}, 0, {vFA}\nv_and_b32 v13, 7, {vLANE}\nv_min_u32 v13, 6, v13")
e(f"v_lshl_add_u32 {vFA}, {vFA}, 3, v13\nv_lshlrev_b32 {vFA}, 7, {vFA}\nv_add_u32 {vFA}, {FLQ}, {vFA}")
e(f"v_lshlrev_b32 {vA}, 15, {vG}\nv_lshl_add_u32 {vA}, {vTOK}, 4, {vA}")
e(f"v_lshrrev_b32 v13, 1, {vG}\nv_lshlrev_b32 {vOST}, 11, v13\nv_and_b32 v13, 1, {vG}\nv_lshl_add_u32 {vOST}, v13, 9, {vOST}\nv_lshl_add_u32 {vOST}, {vTOK}, 4, {vOST}")
e(f"v_add_u32 {vVW}, {sW2K}, {vL16}")
e(f"v_and_b32 v13, 3, {vLANE}\nv_lshlrev_b32 {vVR}, 8, v13\nv_lshrrev_b32 v13, 2, {vLANE}\nv_lshl_add_u32 {vVR}, v13, 4, {vVR}\nv_add_u32 {vVR}, {sW2K}, {vVR}")
e(f"v_and_b32 v13, 1, {vTOK}\nv_cmp_eq_u32 {mP}, 1, v13\nv_lshl_add_u32 v13, {vG}, 2, v13")
e(f"v_cmp_le_u32 {mC0}, v13, {vTOK}\nv_add_u32 v13, 2, v13\nv_cmp_le_u32 {mC1}, v13, {vTOK}")
e(f"v_mov_b32 v13, 0xffff\nv_mov_b32 v14, 0xffff0000\nv_cndmask_b32 v13, v13, v14, {mP}")
e(f"v_cndmask_b32 {vMK[0]}, v13, 0, {mC0}\nv_cndmask_b32 {vMK[1]}, v13, 0, {mC1}")
e(f"v_cndmask_b32 {vMK[2]}, 0, v13, {mC0}\nv_cndmask_b32 {vMK[3]}, 0, v13, {mC1}")
SC = (28 ** -0.5) * math.log2(math.e)
e(f"s_mov_b32 {sSC}, {f32(SC)}\nv_mov_b32 {vNEG}, {f32(-1e30)}")
e(f"s_bitcmp1_b32 {sHW}, 0\ns_cselect_b32 s82, 0xffff, 0\ns_mov_b32 s83, 0\ns_mov_b32 s84, 0\ns_cselect_b32 s85, 0, 0xffff0000")
e(f"s_cmp_eq_u32 {sXCD}, 0\ns_cselect_b32 {sT3}, 0, 256\ns_cselect_b64 {mI0}, -1, 0")
e(f"s_andn2_b64 {mI1}, {mI0}, {mC1}\ns_andn2_b64 {mI0}, {mI0}, {mC0}")
e(f"s_mul_i32 {sQ}, {sHW}, 7\ns_lshr_b32 {sQ}, {sQ}, 1\ns_lshl_b32 {sQ}, {sQ}, 15\ns_lshl_b32 {sT1}, {sXCD}, 12")
e(f"s_add_u32 {sQ}, {sQ}, {sT1}\ns_add_u32 {sQ}, {sQ}, {QKV}\ns_add_u32 {sK}, {sQ}, {56*32768}\ns_add_u32 {sV}, {sQ}, {112*32768}")
e(f"s_lshl_b32 {sO}, {sXCD}, 18\ns_lshl_b32 {sT1}, {sHW}, 12\ns_add_u32 {sO}, {sO}, {sT1}\ns_add_u32 {sO}, {sO}, {OF}")
e.wait_vm(s)
nonce_check("v29")
ps = e(poll_txt("v29", vFA))
e.wait_vm(ps)
poll_check("v29", vFA)
stamp(10)
STA = 96
KP, VH = 192, 196
SR, VT, PR, OR_, OP, TT = 32, 48, 60, 68, 84, 200


def attn_loads(r):
    b = STA + 24 * (r % 4)
    last = None
    for j, so in enumerate((sQ, sK, sV)):
        for qt in range(2):
            last = e(f"buffer_load_dwordx4 {vr(b+8*j+4*qt,4)}, {vA}, {srd(SWS)}, {so} offen offset:{512*(r%4)+256*qt} sc1")
    return last


e(f"s_sub_u32 {sT0}, {sK}, {sT3}\ns_sub_u32 {sT1}, {sV}, {sT3}")
e(f"buffer_load_dwordx4 {vr(KP,4)}, {vA}, {srd(SWS)}, {sT0} offen sc1")
hv = e(f"buffer_load_dwordx4 {vr(VH,4)}, {vA}, {srd(SWS)}, {sT1} offen sc1")
for r in range(2):
    attn_loads(r)
e.wait_vm(hv)
e(f"ds_write_b128 {vVW}, {vr(VH,4)}")
for T_ in range(2):
    e(f"ds_read_b64_tr_b16 {vr(VT+6*T_+4,2)}, {vVR} offset:{8*T_}")
e(f"s_mov_b32 {sU}, 0")
e.lines.append("    s_waitcnt vmcnt(6) lgkmcnt(0)")
e.label("L_attn_loop")
Q2 = range(2)
def T(qt, k): return f"v{TT+8*qt+k}"
for r in range(4):
    b = STA + 24 * r
    QR, KR, VR = b, b + 8, b + 16
    e.lines.append("    s_waitcnt vmcnt(8)")
    for T_ in range(2):
        e(f"v_mov_b32 v{VT+6*T_}, v{VT+6*T_+4}\nv_mov_b32 v{VT+6*T_+1}, v{VT+6*T_+5}")
    for kt in range(2):
        e(f"ds_write_b128 {vVW}, {vr(VR+4*kt,4)} offset:{1024*kt}")
    for qt in Q2:
        for k in range(4):
            e(f"v_cndmask_b32 v{QR+4*qt+k}, v{QR+4*qt+k}, 0, {mLO if k < 2 else mHI}")
    for T_ in range(2):
        for kt in range(2):
            vtr = e(f"ds_read_b64_tr_b16 {vr(VT+6*T_+2+2*kt,2)}, {vVR} offset:{1024*kt+8*T_}")
    kprev = KP if r == 0 else (b - 24 + 12)
    e(f"v_mfma_f32_16x16x32_bf16 {vr(SR,4)}, {vr(kprev,4)}, {vr(QR,4)}, 0")
    e(f"v_mfma_f32_16x16x32_bf16 {vr(SR+4,4)}, {vr(KR,4)}, {vr(QR,4)}, 0")
    e(f"v_mfma_f32_16x16x32_bf16 {vr(SR+8,4)}, {vr(KR,4)}, {vr(QR+4,4)}, 0")
    e(f"v_mfma_f32_16x16x32_bf16 {vr(SR+12,4)}, {vr(KR+4,4)}, {vr(QR+4,4)}, 0")
    if r == 3:
        for k in range(4):
            e(f"v_mov_b32 v{KP+k}, v{KR+4+k}")
    if r == 2:
        e(f"s_cmp_eq_u32 {sU}, 0\ns_cselect_b32 {sT0}, 2048, 0\ns_add_u32 {sQ}, {sQ}, {sT0}\ns_add_u32 {sK}, {sK}, {sT0}\ns_add_u32 {sV}, {sV}, {sT0}")
    attn_loads(r + 2)
    for qt in Q2:
        Pv, Cv = SR + 8 * qt, SR + 8 * qt + 4
        e(f"v_cndmask_b32 {T(qt,0)}, v{Pv}, v{Pv+1}, {mP}\nv_cndmask_b32 {T(qt,1)}, v{Pv+2}, v{Pv+3}, {mP}")
        e(f"v_cndmask_b32 {T(qt,2)}, v{Cv}, v{Cv+1}, {mP}\nv_cndmask_b32 {T(qt,3)}, v{Cv+2}, v{Cv+3}, {mP}")
        e(f"v_cndmask_b32 {T(qt,0)}, {T(qt,0)}, {T(qt,2)}, {mC0}\nv_cndmask_b32 {T(qt,1)}, {T(qt,1)}, {T(qt,3)}, {mC1}")
    if r == 0:
        e(f"v_cndmask_b32 {T(0,0)}, {T(0,0)}, {vNEG}, {mI0}\nv_cndmask_b32 {T(0,1)}, {T(0,1)}, {vNEG}, {mI1}")
        e(f"s_mov_b64 {mI0}, 0\ns_mov_b64 {mI1}, 0")
    def xreduce(op, rr):
        for sw in ("v_permlane16_swap_b32", "v_permlane32_swap_b32"):
            for qt in Q2: e(f"v_mov_b32 {T(qt,rr+1)}, {T(qt,rr)}")
            for qt in Q2: e(f"{sw} {T(qt,rr)}, {T(qt,rr+1)}")
            for qt in Q2: e(f"{op} {T(qt,rr)}, {T(qt,rr)}, {T(qt,rr+1)}")
    for qt in Q2: e(f"v_max_f32 {T(qt,2)}, {T(qt,0)}, {T(qt,1)}")
    xreduce("v_max_f32", 2)
    for qt in Q2:
        e(f"v_sub_f32 {T(qt,0)}, {T(qt,0)}, {T(qt,2)}\nv_sub_f32 {T(qt,1)}, {T(qt,1)}, {T(qt,2)}")
    for qt in Q2:
        e(f"v_mul_f32 {T(qt,0)}, {sSC}, {T(qt,0)}\nv_mul_f32 {T(qt,1)}, {sSC}, {T(qt,1)}")
    for qt in Q2:
        e(f"v_exp_f32 {T(qt,0)}, {T(qt,0)}\nv_exp_f32 {T(qt,1)}, {T(qt,1)}")
    for qt in Q2: e(f"v_add_f32 {T(qt,2)}, {T(qt,0)}, {T(qt,1)}")
    xreduce("v_add_f32", 2)
    for qt in Q2: e(f"v_rcp_f32 {T(qt,2)}, {T(qt,2)}")
    for qt in Q2:
        e(f"v_mul_f32 {T(qt,0)}, {T(qt,0)}, {T(qt,2)}\nv_mul_f32 {T(qt,1)}, {T(qt,1)}, {T(qt,2)}")
    for qt in Q2:
        e(f"v_cvt_pk_bf16_f32 {T(qt,0)}, {T(qt,0)}, {T(qt,0)}\nv_cvt_pk_bf16_f32 {T(qt,1)}, {T(qt,1)}, {T(qt,1)}")
    for qt in Q2:
        for k in range(4):
            e(f"v_and_b32 v{PR+4*qt+k}, {T(qt,k%2)}, {vMK[k]}")
    e.wait_lg(vtr)
    for qt in Q2:
        for Tt in range(2):
            e(f"v_mfma_f32_16x16x32_bf16 {vr(OR_+8*qt+4*Tt,4)}, {vr(VT+6*Tt+2*qt,4)}, {vr(PR+4*qt,4)}, 0")
    for qt in Q2:
        for k in range(4):
            e(f"v_cvt_pk_bf16_f32 v{OP+4*qt+k}, v{OR_+8*qt+2*k}, v{OR_+8*qt+2*k+1}")
        for k in range(4):
            e(f"v_cndmask_b32 v{OP+4*qt+k}, v{OP+4*qt+k}, 0, {mLO if k < 2 else mHI}")
        e(f"buffer_store_dwordx4 {vr(OP+4*qt,4)}, {vOST}, {srd(SWS)}, {sO} offen offset:{1024*(r%2)+256*qt} sc1")
    if r % 2 == 1:
        e(f"s_add_u32 {sO}, {sO}, 65536")
    e.vm_done = e.vm
e(f"s_add_u32 {sU}, {sU}, 1\ns_cmp_lt_u32 {sU}, 2\ns_cbranch_scc1 L_attn_loop")
e.wait_all(force=True)
e("s_barrier")
e(f"s_sub_u32 {sT1}, {sJ}, 28")
publish(flagcalc(sXCD, 3, sT1, FLO))
stamp(11)
stamp_flush()
e.label("L_end")
e("s_endpgm")
e.label("L_nop2")
e.wait_all(force=True)
e("s_barrier")
publish(flagcalc(sRB, 3, sCB, FLQ))
e(f"s_and_b32 {sL2}, {sRB}, 3\ns_cbranch_scc0 L_p3alt")
e(f"s_sub_u32 {sL2}, {sL2}, 1")
if OPT["pf2"]:
    e(f"v_lshrrev_b32 v17, 2, {vLANE}\nv_lshlrev_b32 v17, 12, v17\nv_and_b32 v18, 3, {vLANE}\nv_lshl_add_u32 v17, v18, 7, v17")
    e(f"s_mul_i32 {sT1}, {sWV}, 28\ns_add_u32 {sT1}, {sT1}, {sL2}\ns_add_u32 {sT1}, {sT1}, {4*OPT['pf2h']}\ns_lshl_b32 {sT1}, {sT1}, 16\ns_lshl_b32 {sT3}, {sXCD}, 9\ns_add_u32 {sT1}, {sT1}, {sT3}")
    for k in range(-(-(28 - 4 * OPT["pf2h"]) // 3)):
        e(f"buffer_load_dword v{96+k}, v17, {srd(SW2)}, {sT1} offen{' nt' if OPT['pf2nt'] else ''}\ns_add_u32 {sT1}, {sT1}, {3*65536}")
if OPT["pfo"]:
    e(f"v_lshlrev_b32 v17, 7, {vLANE}\ns_lshl_b32 {sT1}, {sL2}, 2\ns_add_u32 {sT1}, {sT1}, {sWV}\ns_mul_i32 {sT1}, {sT1}, {262*128}")
    for k in range(5):
        e(f"buffer_load_dword v{112+k}, v17, {srd(SWO)}, {sT1} offen\ns_add_u32 {sT1}, {sT1}, {50*128}")
if OPT["stamps"]:
    e.wait_all(force=True)
    stamp(21)
e.label("L_p3alt")
for x in log[:JOIN["n"]]:
    if x.tag == 3:
        if isinstance(x, Op):
            x.seq = x.fn()
        else:
            if x.needs:
                e.wait_vm(max(o.seq for o in x.needs))
            x.fn()
e.wait_all(force=True)
e("s_branch L_p3join")
e.label("L_codeend")

body, nn = pad_hazards(e.lines)
ref = open(os.path.join(os.path.dirname(os.path.abspath(__file__)), "..", NAME + ".s.ref")).read().split("\n")
hdr = [l for l in ref if l.startswith(";") and "@launch" not in l and not l.startswith("; Override") and not l.startswith("; grid=ceil")]
out = hdr + ["; @launch grid=(256,1,1) block=(256,1,1) lds=163840",
             "; generated by tools/gen.py (hand-written generator); options: " + " ".join(f"{k}={v}" for k, v in OPT.items()),
             '.amdgcn_target "amdgcn-amd-amdhsa--gfx950"', ".text", f".globl {NAME}_kernel", ".p2align 8",
             f".type {NAME}_kernel,@function", f"{NAME}_kernel:"] + body + [
    '.section .rodata,"a"', ".p2align 6", f".amdhsa_kernel {NAME}_kernel",
    "  .amdhsa_next_free_vgpr 512", "  .amdhsa_next_free_sgpr 102", "  .amdhsa_accum_offset 256",
    "  .amdhsa_group_segment_fixed_size 0", "  .amdhsa_kernarg_size 88", "  .amdhsa_user_sgpr_count 2",
    "  .amdhsa_user_sgpr_kernarg_segment_ptr 1", "  .amdhsa_system_sgpr_workgroup_id_x 1",
    "  .amdhsa_float_denorm_mode_32 3", ".end_amdhsa_kernel", ""]
open(sys.argv[1], "w").write("\n".join(out))
print(f"wrote {sys.argv[1]}: {len(body)} lines, {nn} s_nop pads")
```

```python
import sys, os, math, struct
sys.path.insert(0, os.path.dirname(os.path.abspath(__file__)))
from asmlib import Emit, Op, Item, schedule, pad_hazards

NAME = "parallel_sum__sliding_local_dilated__mixer_token_mlp__prompt"
OPT = dict(stamps=0, D=11, pace=64, mimic=1, spin=20000, rot=1, rota=0, pfcode=1, pf1=4, pf1nt=1, pfo=1, pf2=1,
           pf2nt=0, outpol=0, npre=32, hb=3, pre=8, pace1=200, pace2=128, qd=8, fill=2, hpad=1280, upad=1280, pace3=64, x1=11, w0=2, bu1=1, bu1nt=1, pf2h=4, w1b=4, diag=-1, diagc=0)
for a in sys.argv[2:]:
    k, v = a.split("=")
    assert k in OPT, k
    OPT[k] = int(v)


def f32(x):
    return "0x%08x" % struct.unpack("<I", struct.pack("<f", x))[0]


HF, UF, OF, QKV, FL = 0x000000, 0x200000, 0x400000, 0x600000, 0xC00000
FLH, FLQ, FLU, FLO = FL, FL + 0x10000, FL + 0x20000, FL + 0x30000
STAMP = 0xD00000
HQ = 65536 + OPT["hpad"]; HD = 4 * HQ + (768 if OPT["hpad"] else 0)
UQ = 57344 + OPT["upad"]; UD = 4 * UQ + (768 if OPT["upad"] else 0)
WS_BYTES = 0x1000000

SX, SW, SWO, SW1, SW2, SWS, SOUT, SB1, SB2, SDBG = [4 * i for i in range(1, 11)]
def srd(b): return f"s[{b}:{b+3}]"
sHD = "s3"
sWV, sXCD, sJ, sNON = "s44", "s45", "s46", "s47"
sRB, sCB = "s48", "s49"
sFT, sDT = "s50", "s51"
sW2K = "s52"
sT0, sT1, sW6K, sT3 = "s53", "s54", "s55", "s56"
sSO = "s57"
sSA = "s58"
sCNT = "s59"
sHB, sUB, sPT, sMSK = "s60", "s61", "s62", "s63"
sL0, sL1, sL2 = "s64", "s65", "s66"
sWC = [f"s{67+i}" for i in range(7)]
sONES = "s74"
sHASP2 = "s75"
sSOo, sOUTO, sOUTO2, sB2O, sGC = "s88", "s89", "s90", "s91", "s92"
sST = 96

vLANE = "v1"
vTR = ["v2", "v3"]
vTP = ["v4", "v5"]
vD1 = ["v6", "v7"]
vD2 = ["v8", "v9"]
vDO = ["v10", "v11"]
vL16 = "v12"
vH = ["v13", "v14"]
vU = ["v15", "v16"]
ACC = 32
STG = 96
NSTG = 16
RING = [17, 18, 19, 8, 9, 10, 11, 12, 13, 14, 15, 16]

e = Emit()
ops, items, log = [], [], []


def vr(b, n=1):
    return f"v{b}" if n == 1 else f"v[{b}:{b+n-1}]"


def ar(b, n=1):
    return f"a{b}" if n == 1 else f"a[{b}:{b+n-1}]"


def stamp(idx):
    if OPT["diag"] >= 0:
        if OPT["diagc"] and idx == 0:
            e("s_memtime s[96:97]")
            e.smem_wait()
        if idx == OPT["diag"]:
            e("s_memtime s[100:101]" if OPT["diagc"] else "s_memrealtime s[100:101]")
            e.smem_wait()
    if not OPT["stamps"]:
        return
    e(f"s_memrealtime s[{sST}:{sST+1}]\ns_memtime s[{sST+2}:{sST+3}]")
    e.smem_wait()
    e(f"v_writelane_b32 v31, s{sST}, {idx}\nv_writelane_b32 v31, s{sST+2}, {32+idx}")


def stamp_flush(side=False):
    if OPT["diag"] >= 0 and (side == (OPT["diag"] in (10, 11, 19, 20))):
        l = newlbl("hold")
        if OPT["diag"] == 100:
            e(f"s_add_u32 s100, {sNON}, 6000")
        elif OPT["diagc"]:
            e(f"s_sub_u32 s100, s100, s96\ns_lshr_b32 s100, s100, 4\ns_min_u32 s100, s100, 20000\ns_add_u32 s100, s100, {sNON}\ns_add_u32 s100, s100, 6000")
        else:
            e(f"s_sub_u32 s100, s100, {sNON}\ns_max_i32 s100, s100, 0\ns_min_u32 s100, s100, 20000\ns_add_u32 s100, s100, {sNON}\ns_add_u32 s100, s100, 6000")
        if not side:
            e(f"s_cmp_eq_u32 {sHASP2}, 0\ns_cbranch_scc1 {l}x")
        e.label(l)
        e("s_memrealtime s[98:99]")
        e.smem_wait()
        e(f"s_sub_u32 s98, s100, s98\ns_cmp_lt_u32 s98, 30000\ns_cbranch_scc1 {l}")
        e.label(l + "x")
    if not OPT["stamps"]:
        return
    e(f"s_lshl_b32 {sT0}, s2, 2\ns_add_u32 {sT0}, {sT0}, {sWV}\ns_lshl_b32 {sT0}, {sT0}, 8\ns_add_u32 {sT0}, {sT0}, {STAMP}")
    e(f"v_lshlrev_b32 v30, 2, {vLANE}")
    e(f"buffer_store_dword v31, v30, {srd(SWS)}, {sT0} offen")


lbl_n = [0]
def newlbl(p):
    lbl_n[0] += 1
    return f"L_{p}{lbl_n[0]}"


def txt(text, **kw):
    atomic = kw.pop("atomic", False)
    lines = [t for t in text.split("\n") if t.strip()]
    step = len(lines) if atomic else 4
    last = None
    for i in range(0, len(lines), step):
        chunk = "\n".join(lines[i:i + step])
        last = Item(lambda c=chunk: e(c), cost=4 * len(lines[i:i + step]), **kw)
        items.append(last)
        kw.pop("needs", None)
    return last


def fn(f, **kw):
    it = Item(f, **kw)
    items.append(it)
    return it


def spin_until(load_txt, cmp_txt):
    l0, l1 = newlbl("spin"), newlbl("ok")
    e(cmp_txt)
    e(f"s_cbranch_vccz {l1}")
    e(f"s_mov_b32 {sCNT}, {OPT['spin']}")
    e.label(l0)
    e.lines.append("    " + load_txt)
    e.lines.append("    s_waitcnt vmcnt(0)")
    e(cmp_txt)
    e(f"s_cbranch_vccz {l1}")
    e(f"s_sub_u32 {sCNT}, {sCNT}, 1")
    e(f"s_cbranch_scc0 {l0}")
    e.label(l1)


def nonce_txt(v):
    return f"buffer_load_dword {v}, off, {srd(SDBG)}, 0 sc1"


def nonce_check(v):
    spin_until(nonce_txt(v), f"v_cmp_eq_u32 vcc, 0, {v}")
    e(f"v_readfirstlane_b32 {sNON}, {v}")


def poll_txt(vdst, vaddr):
    return f"buffer_load_dword {vdst}, {vaddr}, {srd(SWS)}, 0 offen sc1"


def poll_check(vdst, vaddr):
    spin_until(poll_txt(vdst, vaddr), f"v_cmp_ne_u32 vcc, {sNON}, {vdst}")


def publish(calc):
    l = newlbl("nopub")
    e(f"s_cmp_lg_u32 {sWV}, 0")
    e(f"s_cbranch_scc1 {l}")
    e(calc)
    e(f"v_mov_b32 v30, {sNON}")
    e("s_mov_b64 exec, 1")
    e.lines.append(f"    buffer_store_dword v30, off, {srd(SWS)}, {sPT} sc1")
    e("s_mov_b64 exec, -1")
    e.label(l)


def flagcalc(hi, sh, lo, base):
    return f"s_lshl_b32 {sPT}, {hi}, {sh}\ns_add_u32 {sPT}, {sPT}, {lo}\ns_lshl_b32 {sPT}, {sPT}, 7\ns_add_u32 {sPT}, {sPT}, {base}"


e("s_cmp_ge_u32 s2, 256\ns_cbranch_scc1 L_end")
e(f"s_load_dwordx2 s[{SX}:{SX+1}], s[0:1], 0\ns_load_dwordx16 s[76:91], s[0:1], 0\ns_load_dwordx4 s[92:95], s[0:1], 64")
e(f"s_load_dwordx2 s[{SWS}:{SWS+1}], s[0:1], 80")
e(f"s_lshr_b32 {sJ}, s2, 3")
if OPT["pfcode"]:
    e("s_getpc_b64 s[98:99]")
    e.label("L_pc")
    e(f"s_lshl_b32 {sT0}, {sJ}, 10\nv_lshrrev_b32 v18, 5, v0\nv_lshl_add_u32 v18, v18, 7, {sT0}")
    e(f"v_min_u32 v18, L_codeend-L_pc-4, v18")
    e("v_mov_b32 v21, s99\nv_add_co_u32 v20, vcc, s98, v18\nv_addc_co_u32 v21, vcc, 0, v21, vcc")
    e("global_load_dword v255, v[20:21], off")
if OPT["stamps"]:
    e("v_mov_b32 v31, 0")
vXG = "v17"
e(f"v_lshrrev_b32 v18, 6, v0\nv_and_b32 {vLANE}, 63, v0")
e(f"s_and_b32 {sXCD}, s2, 7")
e(f"v_readfirstlane_b32 {sWV}, v18")
e(f"s_mul_i32 {sT0}, {sJ}, 37\ns_lshr_b32 {sT0}, {sT0}, 8\ns_mul_i32 {sT1}, {sT0}, 7\ns_sub_u32 {sCB}, {sJ}, {sT1}")
e(f"s_lshl_b32 {sRB}, {sXCD}, 2\ns_add_u32 {sRB}, {sRB}, {sT0}")
e(f"v_lshrrev_b32 v29, 2, v0\nv_mul_u32_u24 {vXG}, 896, v29\nv_and_b32 v30, 3, v0\nv_lshl_add_u32 {vXG}, v30, 4, {vXG}")
e(f"s_mul_i32 {sT0}, {sRB}, 57344\nv_add_u32 {vXG}, {sT0}, {vXG}")
if OPT["rot"]:
    e(f"s_lshl_b32 {sHD}, {sRB}, 1\ns_add_u32 {sHD}, {sHD}, {sCB}\ns_mul_i32 {sT3}, {sHD}, 37\ns_lshr_b32 {sT3}, {sT3}, 8")
    e(f"s_mul_i32 {sT3}, {sT3}, 7\ns_sub_u32 {sHD}, {sHD}, {sT3}")
else:
    e(f"s_mov_b32 {sHD}, {sCB}")
e(f"s_lshl_b32 {sSA}, {sHD}, 7")
e(f"s_mov_b32 s{SX+2}, 1835008\ns_mov_b32 s{SX+3}, 0x20000")
e(f"s_cmp_ge_u32 {sJ}, 28")
e.smem_wait()
e("s_cbranch_scc1 L_helper")
stamp(0)
srdset = ""
for b, src, n in ((SW, 78, 448 * 2688), (SWS, None, WS_BYTES), (SDBG, 94, 256), (SW1, 84, 2048 * 3584), (SW2, 88, 1792 * 4096),
                  (SWO, 80, 448 * 896), (SOUT, 92, 1835008), (SB1, 86, 3584), (SB2, 90, 4096)):
    if src is not None:
        srdset += f"s_mov_b64 s[{b}:{b+1}], s[{src}:{src+1}]\n"
    srdset += f"s_mov_b32 s{b+2}, {n}\ns_mov_b32 s{b+3}, s{SX+3}\n"
srdset += f"s_lshl_b32 {sW2K}, {sWV}, 11\nv_lshlrev_b32 {vL16}, 4, {vLANE}\n"

vW, vXW, vXR, vWR, vHT = [f"v{18+i}" for i in range(6)], "v24", "v25", ["v26", "v27"], "v28"
XR = 32
FR = 96
xl = []
for i in range(14):
    def f(i=i):
        if i % 2 == 0:
            e(f"s_mul_i32 {sWC[i//2]}, {sSA}, 1344")
        s = e(f"buffer_load_dwordx4 {vr(XR+4*i,4)}, {vXG}, {srd(SX)}, {sSA} offen offset:{64*(i%2)}")
        if i % 2 == 1 and i < 13:
            e(f"s_add_u32 {sSA}, {sSA}, 128\ns_cmp_eq_u32 {sSA}, 896\ns_cselect_b32 {sSA}, 0, {sSA}")
        return s
    xl.append(Op(f))
ops += xl
vROW, vCOL = "v208", "v209"
t = f"""v_lshrrev_b32 v210, 5, {vLANE}
v_bfe_u32 v211, {vLANE}, 2, 2
v_lshl_add_u32 {vROW}, v210, 2, v211
v_bfe_u32 v212, {vLANE}, 4, 1
v_lshlrev_b32 {vCOL}, 4, v30
v_lshl_add_u32 {vCOL}, v212, 6, {vCOL}
s_mul_i32 {sT0}, {sWV}, {16*2688}
s_mul_i32 {sT1}, {sCB}, 384
s_add_u32 {sT0}, {sT0}, {sT1}
v_mul_u32_u24 {vW[0]}, 2688, {vROW}
v_add3_u32 {vW[0]}, {vW[0]}, {vCOL}, {sT0}
s_mul_i32 {sW6K}, {sWV}, 6144
"""
for p in range(1, 6):
    t += f"v_add_u32 {vW[p]}, {(p//3)*8*2688 + (p%3)*128}, {vW[0]}\n"
it_wset = txt(srdset + t, atomic=True, issued=xl[:OPT["x1"]], pace=10**8)


def w_chunk(c, after):
    r = []
    for p in range(6):
        def f(p=p):
            e(f"s_add_u32 m0, {sW6K}, {65536 + (c % 4) * 24576 + p * 1024}")
            return e(f"buffer_load_dwordx4 {vW[p]}, {srd(SW)}, {sWC[c]} offen lds")
        r.append(Op(f, after))
    return r


wl = {c: w_chunk(c, [it_wset]) for c in range(4)}
txt(f"""v_mul_u32_u24 {vXW}, 1056, v30
v_lshl_add_u32 {vXW}, v29, 4, {vXW}
v_lshlrev_b32 v213, 6, v211
v_lshl_add_u32 v213, v212, 5, v213
v_lshl_add_u32 v213, v30, 3, v213
s_and_b32 {sT0}, {sWV}, 1
s_lshl_b32 {sT0}, {sT0}, 9
v_and_b32 v214, 31, {vLANE}
v_mul_u32_u24 {vXR}, 1056, v210
v_lshl_add_u32 {vXR}, v214, 4, {vXR}
v_add_u32 {vXR}, {sT0}, {vXR}
s_lshr_b32 {sT0}, {sWV}, 1
s_lshl_b32 {sT0}, {sT0}, 8
s_add_u32 {sT0}, {sT0}, 65536
v_mul_u32_u24 {vWR[0]}, 3072, v210
v_add3_u32 {vWR[0]}, {vWR[0]}, v213, {sT0}
v_add_u32 {vWR[1]}, 49152, {vWR[0]}
v_bfe_u32 v215, {vLANE}, 1, 1
v_lshl_add_u32 v215, v212, 1, v215
v_mul_u32_u24 {vHT}, 1056, v215
v_lshl_add_u32 v215, v210, 3, v211
v_lshl_add_u32 {vHT}, v215, 4, {vHT}
v_and_b32 v215, 1, {vLANE}
v_lshl_add_u32 {vHT}, v215, 3, {vHT}
s_lshl_b32 {sT0}, {sWV}, 8
v_add_u32 {vHT}, {sT0}, {vHT}
s_mov_b32 {sONES}, 0x3f803f80
s_mov_b32 {sMSK}, 0xffff0000
v_mov_b32 v216, 0
v_mov_b32 v217, 0""")
FILL = []
def fill(text, atomic=False):
    lines = [t for t in text.split("\n") if t.strip()]
    if atomic:
        FILL.append("\n".join(lines))
    else:
        FILL.extend(lines)
fill(f"""s_add_u32 {sT0}, {sW2K}, 65536
v_lshl_add_u32 {vTR[0]}, v210, 10, v213
v_add_u32 {vTR[0]}, {sT0}, {vTR[0]}
v_add_u32 {vTR[1]}, 65536, {vTR[0]}
v_lshl_add_u32 {vTP[0]}, v210, 9, v213
v_add_u32 {vTP[0]}, {sT0}, {vTP[0]}
v_add_u32 {vTP[1]}, 65536, {vTP[0]}""")
fill(f"""s_lshr_b32 {sT0}, {sXCD}, 1
s_mul_i32 {sT0}, {sT0}, 49
s_and_b32 {sT1}, {sXCD}, 1
s_mul_i32 {sT3}, {sT1}, 25
s_add_u32 {sT0}, {sT0}, {sT3}
s_add_u32 {sT1}, {sT1}, {sJ}""")
fill(f"""s_cmp_eq_u32 {sT1}, 6
s_cselect_b32 {sHASP2}, 1, 0
s_cselect_b32 {sT3}, 24, 0""", atomic=True)
fill(f"""s_and_b32 {sT1}, {sRB}, 3
s_sub_u32 {sT1}, {sJ}, {sT1}""")
fill(f"""s_cmp_lt_u32 {sCB}, 6
s_cselect_b32 {sHASP2}, 1, {sHASP2}
s_cselect_b32 {sT1}, {sT1}, {sT3}""", atomic=True)
fill(f"""s_add_u32 {sT0}, {sT0}, {sT1}
s_mul_i32 {sFT}, {sT0}, 9363
s_lshr_b32 {sFT}, {sFT}, 16
s_mul_i32 {sT1}, {sFT}, 7
s_sub_u32 {sDT}, {sT0}, {sT1}""")
fill(f"""s_mul_i32 {sT0}, {sWV}, {512*3584}
s_lshl_b32 {sT1}, {sFT}, 7
s_add_u32 {sT0}, {sT0}, {sT1}
s_lshr_b32 {sT1}, {sWV}, 1
s_lshl_b32 {sT1}, {sT1}, 6
v_xor_b32 v215, {sT1}, {vCOL}
v_mul_u32_u24 {vD1[0]}, 3584, {vROW}
v_add3_u32 {vD1[0]}, {vD1[0]}, v215, {sT0}
v_add_u32 {vD1[1]}, {8*3584-1024}, {vD1[0]}""")
if OPT["bu1"]:
    R0 = 64 * OPT["pf1"]
    RPW = -(-(512 - R0) // 28)
    NBU = -(-RPW // 16)
    fill(f"""v_lshrrev_b32 v250, 2, {vLANE}
v_and_b32 v251, 3, {vLANE}
v_lshlrev_b32 v251, 7, v251
s_mul_i32 {sL2}, {sJ}, {RPW}
s_add_u32 {sL2}, {sL2}, {R0}
s_add_u32 {sT1}, {sL2}, {RPW}
s_min_u32 {sT1}, {sT1}, 512
v_add_u32 v250, {sL2}, v250
v_mov_b32 v249, 0x7fffffff""")
    for k in range(NBU):
        fill(f"""v_mul_u32_u24 v{252+k}, 3584, v250
v_add_u32 v{252+k}, v{252+k}, v251""")
        fill(f"""v_cmp_gt_u32 vcc, {sT1}, v250
v_add_u32 v250, 16, v250
v_cndmask_b32 v{252+k}, v249, v{252+k}, vcc""", atomic=True)
    fill(f"""s_mul_i32 {sL2}, {sWV}, {512*3584}
s_mul_i32 {sT1}, {sXCD}, 7
s_lshr_b32 {sT1}, {sT1}, 1
s_lshl_b32 {sT1}, {sT1}, 7
s_add_u32 {sL2}, {sL2}, {sT1}""")
NFILL1 = len(FILL)
fill(f"""s_mul_i32 {sT0}, {sWV}, {448*4096}
s_lshl_b32 {sT1}, {sRB}, 7
s_add_u32 {sT0}, {sT0}, {sT1}
v_lshlrev_b32 {vD2[0]}, 12, {vROW}
v_add3_u32 {vD2[0]}, {vD2[0]}, {vCOL}, {sT0}
v_add_u32 {vD2[1]}, {8*4096-1024}, {vD2[0]}
s_mul_i32 {sT0}, {sWV}, {112*896}
s_lshl_b32 {sT1}, {sCB}, 7
s_add_u32 {sT0}, {sT0}, {sT1}
s_and_b32 {sT1}, {sRB}, {OPT["rota"]}
s_lshl_b32 {sT1}, {sT1}, 6
v_xor_b32 v215, {sT1}, {vCOL}
v_mul_u32_u24 {vDO[0]}, 896, {vROW}
v_add3_u32 {vDO[0]}, {vDO[0]}, v215, {sT0}
v_add_u32 {vDO[1]}, {8*896-1024}, {vDO[0]}
s_lshl_b32 {sT1}, {sT1}, 4
v_add_u32 {vU[0]}, {sT1}, {vL16}
v_xor_b32 {vU[1]}, 1024, {vU[0]}
s_xor_b32 {sT0}, {sWV}, {sFT if OPT["rota"] else 0}
s_and_b32 {sT0}, {sT0}, 1
s_lshl_b32 {sT0}, {sT0}, 10
v_add_u32 {vH[0]}, {sT0}, {vL16}
v_xor_b32 {vH[1]}, 1024, {vH[0]}""")
fn(lambda: None, cost=0, issued=xl + wl[0][:OPT["w0"]], pace=OPT["pace1"])
vS, vQ = "v216", "v217"
for i in range(14):
    t = ""
    for k in range(4):
        d = 4 * i + k
        t += f"v_dot2c_f32_bf16 {vS}, {sONES}, v{XR+d}\nv_dot2c_f32_bf16 {vQ}, v{XR+d}, v{XR+d}\n"
        t += f"v_lshlrev_b32 v{FR+2*d}, 16, v{XR+d}\nv_and_b32 v{FR+2*d+1}, {sMSK}, v{XR+d}\n"
    txt(t, needs=[xl[i]], D=0)
    if i == 0:
        fn(lambda: stamp(1), cost=0)
it_p1 = fn(lambda: stamp(2), cost=0, pace=OPT["pace2"])
nonce_op = Op(lambda: e(nonce_txt("v29")), [it_p1], cost=8)
t = ""
for perm in ("[1,0,3,2]", "[2,3,0,1]"):
    t += f"v_add_f32_dpp {vS}, {vS}, {vS} quad_perm:{perm} row_mask:0xf bank_mask:0xf\n"
    t += f"v_add_f32_dpp {vQ}, {vQ}, {vQ} quad_perm:{perm} row_mask:0xf bank_mask:0xf\n"
vM, vV, vR1, vB1, vR2, vB2 = "v218", "v219", "v220", "v222", "v224", "v226"
t += f"v_mul_f32 {vM}, {f32(1/448)}, {vS}\nv_mul_f32 {vV}, {f32(1/448)}, {vQ}\n"
t += f"v_fma_f32 {vV}, -{vM}, {vM}, {vV}\nv_max_f32 {vV}, 0, {vV}\n"


def rstd(dst, var):
    if OPT["mimic"]:
        return (f"v_cvt_pk_bf16_f32 {dst}, {var}, {var}\nv_and_b32 {dst}, {sMSK}, {dst}\nv_add_f32 {dst}, {f32(1e-5)}, {dst}\n"
                f"v_cvt_pk_bf16_f32 {dst}, {dst}, {dst}\nv_and_b32 {dst}, {sMSK}, {dst}\nv_sqrt_f32 {dst}, {dst}\n"
                f"v_cvt_pk_bf16_f32 {dst}, {dst}, {dst}\nv_and_b32 {dst}, {sMSK}, {dst}\nv_rcp_f32 {dst}, {dst}\n")
    return f"v_add_f32 {dst}, {f32(1e-5)}, {var}\nv_rsq_f32 {dst}, {dst}\n"


t += rstd(vR1, vV)
t += f"v_mul_f32 {vV}, {vV}, {vR1}\nv_mul_f32 {vV}, {vV}, {vR1}\n"
t += rstd(vR2, vV)
t += f"v_mul_f32 {vR2}, {vR2}, {vR1}\nv_mul_f32 {vB1}, {vM}, {vR1}\nv_mul_f32 {vB2}, {vM}, {vR2}\n"
HT = 228
for d in range(8):
    t += f"v_pk_fma_f32 {vr(HT+2*d,2)}, {vr(FR+2*d,2)}, v[224:225], v[226:227] op_sel_hi:[1,0,0] neg_lo:[0,0,1] neg_hi:[0,0,1]\n"
for d in range(8):
    t += f"v_cvt_pk_bf16_f32 v{244+d}, v{HT+2*d}, v{HT+2*d+1}\n"
t += f"s_mul_i32 {sL0}, {sHD}, {HD}\ns_lshl_b32 {sL1}, {sRB}, 13\ns_add_u32 {sL0}, {sL0}, {sL1}\ns_add_u32 {sL0}, {sL0}, {sW2K}\n"
t += f"s_lshr_b32 {sL1}, {sRB}, 3\ns_mul_i32 {sL1}, {sL1}, {HQ-65536}\ns_add_u32 {sL0}, {sL0}, {sL1}\n"
txt(t)
S = {}
def h_stage():
    e(f"ds_write_b128 {vXW}, v[244:247]\nds_write_b128 {vXW}, v[248:251] offset:{4*1056}")
    for nt in range(2):
        for rd in range(2):
            S["hr"] = e(f"ds_read_b64_tr_b16 {vr(HT+4*nt+2*rd,2)}, {vHT} offset:{nt*4*1056+rd*64}")
fn(h_stage, cost=40)


def xn_part(i):
    t = ""
    for k in range(4):
        d = 4 * i + k
        t += f"v_pk_fma_f32 {vr(FR+2*d,2)}, {vr(FR+2*d,2)}, v[220:221], v[222:223] op_sel_hi:[1,0,0] neg_lo:[0,0,1] neg_hi:[0,0,1]\n"
    for k in range(4):
        d = 4 * i + k
        t += f"v_cvt_pk_bf16_f32 v{XR+d}, v{FR+2*d}, v{FR+2*d+1}\n"
    t += f"ds_write_b128 {vXW}, {vr(XR+4*i,4)} offset:{4*i*1056}\n"
    fn(lambda: e(t), cost=56)


xn_part(0)
xn_part(1)
def h_store():
    e.wait_lg(S["hr"])
    for nt in range(2):
        S["hst"] = e(f"buffer_store_dwordx4 {vr(HT+4*nt,4)}, {vL16}, {srd(SWS)}, {sL0} offen offset:{1024*nt} sc1")
fn(h_store, cost=0)
if OPT["stamps"] > 1:
    fn(lambda: stamp(30), cost=0)
for i in range(2, 14):
    xn_part(i)
fn(lambda: stamp(3), cost=0, pace=OPT["pace"])
ops += wl[0] + wl[1] + wl[2] + [nonce_op] + wl[3]

ring_n = [0]
ring_last = {}


def dma_unit(vd, sr, soff, sbase, after, tag=None):
    unit = RING[ring_n[0] % len(RING)]
    ring_n[0] += 1
    prev = [ring_last[unit]] if unit in ring_last else []
    def f0():
        for r in prev:
            e.wait_lg(r.lgseq)
        e(f"s_add_u32 m0, {sW2K}, {unit*8192}")
        e(f"s_add_u32 {sSO}, {sbase}, {soff}" if sbase else f"s_mov_b32 {sSO}, {soff}")
        return e(f"buffer_load_dwordx4 {vd[0]}, {srd(sr)}, {sSO} offen lds")
    def f1():
        return e(f"buffer_load_dwordx4 {vd[1]}, {srd(sr)}, {sSO} offen offset:1024 lds")
    return unit, [Op(f0, list(after) + prev, tag=tag), Op(f1, tag=tag)]


def read_item(bases, step, unit, slot, needs, tag=None):
    it = Item(None, needs, cost=16, tag=tag)
    def f():
        for t in range(2):
            for rd in range(2):
                it.lgseq = e(f"ds_read_b64_tr_b16 {ar(8*slot+4*t+2*rd,2)}, {bases[unit//8-1]} offset:{(unit%8)*8192+t*256+rd*step}")
    it.fn = f
    ring_last[unit] = it
    return it


BF = [96, 100]
AF = [104, 116]


def p1_reads(n):
    c, ks, buf = n // 4, n % 4, n % 2
    r = [f"ds_read_b128 {vr(BF[buf],4)}, {vXR} offset:{n*2112}"]
    s = c % 4
    for a in range(3):
        for rd in range(2):
            r.append(f"ds_read_b64_tr_b16 {vr(AF[buf]+4*a+2*rd,2)}, {vWR[s//2]} offset:{(s%2)*24576+ks*6144+a*1024+rd*512}")
    return r


bar = {}
def barrier_item(c):
    def f():
        if c == OPT["hb"]:
            nonce_check("v29")
            e.wait_vm(S["hst"])
        e.wait_lg(e.lg - 1)
        e("s_barrier")
        if c == OPT["hb"]:
            publish(flagcalc(sHD, 5, sRB, FLH))
        if OPT["stamps"] > 1:
            stamp(22 + c)
    needs = list(wl[c]) if c < 7 else []
    if c == OPT["hb"]:
        needs.append(nonce_op)
    bar[c] = fn(f, needs=needs, D=6, cost=16)


rseq = {}
barrier_item(0)
fn(lambda: rseq.__setitem__(0, [e(t) for t in p1_reads(0)]), cost=28)
vPH, vPHA, vBA1, BIAS = "v184", "v185", "v186", 188
p2set = f"""s_lshl_b32 {sT0}, {sDT}, 5
s_lshl_b32 {sT1}, {sWV}, 3
s_add_u32 {sT0}, {sT0}, {sT1}
s_lshl_b32 {sT0}, {sT0}, 7
s_add_u32 {sT0}, {sT0}, {FLH}
v_and_b32 {vPHA}, 7, {vLANE}
v_lshlrev_b32 {vPHA}, 7, {vPHA}
v_add_u32 {vPHA}, {sT0}, {vPHA}
s_lshl_b32 {sT0}, {sFT}, 7
s_lshr_b32 {sT1}, {sWV}, 1
s_lshl_b32 {sT1}, {sT1}, 6
s_add_u32 {sT0}, {sT0}, {sT1}
v_lshrrev_b32 {vBA1}, 5, {vLANE}
v_lshl_add_u32 {vBA1}, {vBA1}, 3, {sT0}
s_mul_i32 {sHB}, {sDT}, {HD}
s_mul_i32 {sT1}, {sWV}, {HQ}
s_add_u32 {sHB}, {sHB}, {sT1}
"""
fill(p2set)
w1ops, w1rd = {}, {}
W1B = Item(lambda: None, cost=0)
def w1_unit(i, after):
    unit, o = dma_unit(vD1, SW1, 16 * i * 3584, None, after)
    w1ops[i] = o
    w1rd[i] = read_item(vTR, 512, unit, i, o)
for n in range(28):
    c, ks, buf = n // 4, n % 4, n % 2
    if ks == 3:
        barrier_item(c + 1)
        if c + 4 <= 6:
            wl[c + 4] = w_chunk(c + 4, [bar[c + 1]])
            ops += wl[c + 4]
            if c + 4 == 6 and OPT["bu1"]:
                for k in range(NBU):
                    def bu(k=k):
                        assert S["nfill"] >= NFILL1
                        return e(f"buffer_load_dword v{254+k}, v{252+k}, {srd(SW1)}, {sL2} offen{' nt' if OPT['bu1nt'] else ''}")
                    ops.append(Op(bu))
        else:
            for i in range(3 * (c - 3), 3 * (c - 3) + 3):
                w1_unit(i, [bar[c + 1], W1B])
                ops += w1ops[i]
        if c + 1 == OPT["w1b"]:
            items.append(W1B)
    for a in range(3):
        def f(n=n, a=a, buf=buf):
            if n < 27:
                nxt = p1_reads(n + 1)
                for t in nxt[[0, 3, 5][a]:[3, 5, 7][a]]:
                    rseq.setdefault(n + 1, []).append(e(t))
            e.wait_lg(rseq[n][2 + 2 * a])
            cin = "0" if n == 0 else vr(ACC + 16 * a, 16)
            e(f"v_mfma_f32_32x32x16_bf16 {vr(ACC+16*a,16)}, {vr(AF[buf]+4*a,4)}, {vr(BF[buf],4)}, {cin}")
            for _ in range(OPT["fill"] if n < 27 else 1000):
                if FILL:
                    e(FILL.pop(0))
                    S["nfill"] = S.get("nfill", 0) + 1
            if n == 14 and a == 2:
                assert S["nfill"] >= NFILL1
        fn(f, cost=32)
fn(lambda: stamp(4), cost=0)
txt(f"""v_lshrrev_b32 v29, 5, {vLANE}
v_and_b32 v30, 31, {vLANE}
v_lshlrev_b32 v29, 15, v29
v_lshl_add_u32 v29, v30, 4, v29
s_mul_i32 {sL0}, {sCB}, 24
s_lshr_b32 {sT1}, {sWV}, 1
s_lshl_b32 {sT1}, {sT1}, 2
s_add_u32 {sL0}, {sL0}, {sT1}
s_lshl_b32 {sL0}, {sL0}, 15
s_lshl_b32 {sT1}, {sRB}, 10
s_add_u32 {sL0}, {sL0}, {sT1}
s_and_b32 {sT1}, {sWV}, 1
s_lshl_b32 {sT1}, {sT1}, 9
s_add_u32 {sL0}, {sL0}, {sT1}""", atomic=True)
QP = 160
for a in range(3):
    def f(a=a):
        for k in range(8):
            e(f"v_cvt_pk_bf16_f32 v{QP+8*a+k}, v{ACC+16*a+2*k}, v{ACC+16*a+2*k+1}")
        for b in range(2):
            q = QP + 8 * a + 4 * b
            e(f"s_add_u32 {sT1}, {sL0}, {QKV + (8*a+2*b)*32768}")
            e(f"v_permlane32_swap_b32 v{q}, v{q+2}\nv_permlane32_swap_b32 v{q+1}, v{q+3}")
            S["qst"] = e(f"buffer_store_dwordx4 {vr(q,4)}, v29, {srd(SWS)}, {sT1} offen sc1")
    fn(f, cost=0)


def hoist(cands):
    def f():
        pos = items.index(it)
        el = [r for r in cands() if not r.done and all(o.seq is not None for o in r.needs)]
        for r in el:
            items.remove(r)
            r.D = 2
        items[pos + 1:pos + 1] = el
    it = fn(f, cost=0)


fn(lambda: e(f"s_cmp_eq_u32 {sHASP2}, 0\ns_cbranch_scc1 L_nop2"), cost=8)
def q_publish():
    e.wait_vm(S["qst"])
    e("s_barrier")
    publish(flagcalc(sRB, 3, sCB, FLQ))
    stamp(5)

NK2, NPRE = 32, OPT["npre"]
for i in range(12, NK2):
    w1_unit(i, [])
bias_ops = [Op(lambda j=j: e(f"buffer_load_dwordx2 {vr(BIAS+2*j,2)}, {vBA1}, {srd(SB1)}, 0 offen offset:{16*j}"), cost=16) for j in range(4)]
pollH = Op(lambda: e(poll_txt(vPH, vPHA)), cost=8)
stg_n = [0]
stg_last = {}


def act_load(vaddr, pre_txt, so, off, after, tag=None):
    slot = stg_n[0] % NSTG
    stg_n[0] += 1
    def f():
        if pre_txt:
            e(pre_txt)
        return e(f"buffer_load_dwordx4 {vr(STG+4*slot,4)}, {vaddr}, {srd(SWS)}, {so} offen offset:{off} sc1")
    prev = [stg_last[slot]] if slot in stg_last else []
    return slot, Op(f, list(after) + prev, tag=tag)


def mfma_item(acc, A, B, zero, needs, rd, slot):
    def f():
        e.wait_lg(rd.lgseq)
        e(f"v_mfma_f32_32x32x16_bf16 {vr(acc,16)}, {A}, {B}, {'0' if zero else vr(acc,16)}")
    it = Item(f, needs, cost=32)
    stg_last[slot] = it
    return it


for i in range(12, NPRE - 2):
    ops += w1ops[i]
ops += [pollH] + bias_ops + w1ops[NPRE - 2] + w1ops[NPRE - 1]
for i in range(NPRE - 4):
    items.append(w1rd[i])
    if i == 3 + OPT["qd"]:
        fn(q_publish, cost=16)
it_pollH = fn(lambda: (poll_check(vPH, vPHA), stamp(12)), needs=[pollH], D=8, cost=16)
t = ""
for j in range(4):
    for k in range(2):
        t += f"v_lshlrev_b32 v{ACC+4*j+2*k}, 16, v{BIAS+2*j+k}\nv_and_b32 v{ACC+4*j+2*k+1}, 0xffff0000, v{BIAS+2*j+k}\n"
RED = 196
t += f"v_add_u32 v{RED}, {sW2K}, {vL16}\n"
for q in range(1, 4):
    t += f"v_xor_b32 v{RED+q}, {q*2048}, v{RED}\n"
C0 = -2.0 * math.sqrt(2.0 / math.pi) * math.log2(math.e)
C1 = C0 * 0.044715
t += f"v_mov_b32 v186, {f32(C1)}\nv_mov_b32 v187, {f32(C0)}\n"
txt(t, needs=bias_ops)
txt(f"""s_mul_i32 {sL0}, {sDT}, {UD}
s_lshl_b32 {sT1}, {sFT}, 13
s_add_u32 {sL0}, {sL0}, {sT1}
s_mul_i32 {sT1}, {sFT}, 37
s_lshr_b32 {sT1}, {sT1}, 8
s_mul_i32 {sT1}, {sT1}, {UQ-57344}
s_add_u32 {sL0}, {sL0}, {sT1}
s_lshr_b32 {sT1}, {sWV}, 1
s_lshl_b32 {sT1}, {sT1}, 12
s_add_u32 {sL0}, {sL0}, {sT1}
s_add_u32 {sL0}, {sL0}, {UF}""", atomic=True)
for i in range(NPRE - 4, NPRE):
    items.append(w1rd[i])


def red_write(q, k):
    return f"ds_write_b128 v{RED}, {vr(ACC+16*q+4*k,4)} offset:{(2*(q-1)+k//2)*8192+(k%2)*1024}"


p2last = {}
for ps, nt in enumerate((1, 0)):
    for i in range(NK2):
        pre_txt = f"s_add_u32 {sSA}, {sHB}, {i*2048}" if i % 2 == 0 else None
        slot, o = act_load(vH[nt], pre_txt, sSA, 2048 * (i % 2), [it_pollH])
        ops.append(o)
        if ps == 0 and NPRE + i < NK2:
            ops += w1ops[NPRE + i]
        for mt in range(2):
            q = 2 * mt + nt
            m = mfma_item(ACC + 16 * q, ar(8 * i + 4 * mt, 4), vr(STG + 4 * slot, 4), i == 0 and q != 0, [o], w1rd[i], slot)
            items.append(m)
            p2last[i] = m
        if ps == 0 and NPRE + i < NK2:
            items.append(w1rd[NPRE + i])
        if ps == 1 and 4 <= i < 12:
            fn(lambda i=i: e(red_write([1, 3][(i - 4) // 4], (i - 4) % 4)), cost=0)
    fn(lambda ps=ps: stamp([13, 6][ps]), cost=0)

vPO, vPOA, vPU, vPUA, vOA, vBA2 = "v201", "v202", "v203", "v204", "v205", "v206"
XRES, BRES, WA, RA = 208, 216, 220, 228
p3set = f"""v_and_b32 v207, 7, {vLANE}
v_min_u32 v207, 6, v207
v_lshlrev_b32 v207, 7, v207
s_lshl_b32 {sT0}, {sXCD}, 3
s_add_u32 {sT0}, {sT0}, {sWV}
s_lshl_b32 {sT0}, {sT0}, 7
s_add_u32 {sT0}, {sT0}, {FLO}
v_mov_b32 {vPOA}, {sT0}
s_lshl_b32 {sT0}, {sCB}, 5
s_mul_i32 {sT1}, {sWV}, 7
s_add_u32 {sT0}, {sT0}, {sT1}
s_lshl_b32 {sT0}, {sT0}, 7
s_add_u32 {sT0}, {sT0}, {FLU}
v_add_u32 {vPUA}, {sT0}, v207
s_lshl_b32 {sSOo}, {sRB}, 16
s_lshl_b32 {sT1}, {sWV}, 14
s_add_u32 {sSOo}, {sSOo}, {sT1}
s_add_u32 {sSOo}, {sSOo}, {OF}
v_lshrrev_b32 v207, 3, v0
v_and_b32 v218, 7, v0
v_mul_u32_u24 {vOA}, 896, v207
v_lshl_add_u32 {vOA}, v218, 4, {vOA}
v_lshlrev_b32 {vBA2}, 1, v207
s_mul_i32 {sOUTO}, {sRB}, 57344
s_lshl_b32 {sT1}, {sCB}, 7
s_add_u32 {sOUTO}, {sOUTO}, {sT1}
s_add_u32 {sOUTO2}, {sOUTO}, {32*896}
s_lshl_b32 {sB2O}, {sRB}, 7
s_mul_i32 {sUB}, {sCB}, {UD}
s_mul_i32 {sT1}, {sWV}, {UQ}
s_add_u32 {sUB}, {sUB}, {sT1}
s_add_u32 {sUB}, {sUB}, {UF}
"""
it_p3set = Item(lambda: e(p3set), cost=100, tag=3)
items.insert(items.index(it_pollH), it_p3set)
WOROW = [0, 16, 24, 40, 56, 72, 80, 96]
w2ops, w2rd, woops, word = {}, {}, {}, {}
for i in range(28):
    unit, o = dma_unit(vD2, SW2, 16 * i * 4096, None, [it_p3set], tag=3)
    w2ops[i] = o
    w2rd[i] = read_item(vTP, 1024, unit, i, o, tag=3)
    ops += o
for i in range(8):
    unit, o = dma_unit(vDO, SWO, WOROW[i] * 896, None, [], tag=3)
    woops[i] = o
    word[i] = read_item(vTR, 512, unit, 28 + i % 4, o, tag=3)

RB_ = 96 + 64
def rbuf(q, k):
    return (160 + 16 * (q - 1) + 4 * k) if (q, k) < (2, 2) else (232 + 16 * (q - 2) + 4 * k - 8)
def red1():
    for k in range(4):
        e(red_write(2, k))
    e.wait_lg(e.lg - 1)
    e("s_barrier")
    for k in range(4):
        for q in range(1, 4):
            S["r", k, q] = e(f"ds_read_b128 {vr(rbuf(q,k),4)}, v{RED+q} offset:{(2*(q-1)+k//2)*8192+(k%2)*1024}")
fn(red1, cost=300, pre=4, pace=OPT["pace3"])
G = 48
for k in range(4):
    fn(lambda k=k: e.wait_lg(S["r", k, 3]), cost=0)
    t = ""
    for h2 in range(2):
        a = ACC + 4 * k + 2 * h2
        t += f"v_pk_add_f32 {vr(rbuf(1,k)+2*h2,2)}, {vr(rbuf(1,k)+2*h2,2)}, {vr(rbuf(2,k)+2*h2,2)}\n"
        t += f"v_pk_add_f32 {vr(a,2)}, {vr(a,2)}, {vr(rbuf(3,k)+2*h2,2)}\n"
    for h2 in range(2):
        a = ACC + 4 * k + 2 * h2
        t += f"v_pk_add_f32 {vr(a,2)}, {vr(a,2)}, {vr(rbuf(1,k)+2*h2,2)}\n"
    R, H = range(4), range(2)
    a = ACC + 4 * k
    for i in H: t += f"v_pk_mul_f32 {vr(G+2*i,2)}, {vr(a+2*i,2)}, {vr(a+2*i,2)}\n"
    for i in H: t += f"v_pk_fma_f32 {vr(G+2*i,2)}, {vr(G+2*i,2)}, v[186:187], v[186:187] op_sel:[0,0,1] op_sel_hi:[1,0,1]\n"
    for i in H: t += f"v_pk_mul_f32 {vr(G+2*i,2)}, {vr(G+2*i,2)}, {vr(a+2*i,2)}\n"
    for i in R: t += f"v_exp_f32 v{G+i}, v{G+i}\n"
    for i in H: t += f"v_pk_add_f32 {vr(G+2*i,2)}, {vr(G+2*i,2)}, 1.0 op_sel_hi:[1,0]\n"
    for i in R: t += f"v_rcp_f32 v{G+i}, v{G+i}\n"
    for i in H: t += f"v_pk_mul_f32 {vr(G+2*i,2)}, {vr(G+2*i,2)}, {vr(a+2*i,2)}\n"
    t += f"v_cvt_pk_bf16_f32 v{G+8+2*k}, v{G}, v{G+1}\nv_cvt_pk_bf16_f32 v{G+9+2*k}, v{G+2}, v{G+3}\n"
    txt(t)
    if k % 2 == 1:
        fn(lambda k=k: S.__setitem__("ust", e(f"buffer_store_dwordx4 {vr(G+8+4*(k//2),4)}, {vH[0]}, {srd(SWS)}, {sL0} offen offset:{2048*(k//2)} sc1")), cost=0)
fn(lambda: stamp(14), cost=0, pace=OPT["pace"])
hoist(lambda: [w2rd[i] for i in sorted(w2rd)])
JOIN = {}
def u_publish():
    e.wait_vm(S["ust"])
    e("s_barrier")
    publish(flagcalc(sDT, 5, sFT, FLU))
    stamp(7)
    e.label("L_p3join")
    JOIN["n"] = len(log)
fn(u_publish, cost=16, pre=OPT["pre"])

res_ops = [Op(lambda: e(f"buffer_load_dwordx4 {vr(XRES,4)}, {vOA}, {srd(SX)}, {sOUTO} offen"), tag=3),
           Op(lambda: e(f"buffer_load_dwordx4 {vr(XRES+4,4)}, {vOA}, {srd(SX)}, {sOUTO2} offen"), tag=3),
           Op(lambda: e(f"buffer_load_ushort v{BRES}, {vBA2}, {srd(SB2)}, {sB2O} offen"), cost=16, tag=3),
           Op(lambda: e(f"buffer_load_ushort v{BRES+1}, {vBA2}, {srd(SB2)}, {sB2O} offen offset:64"), cost=16, tag=3)]
pollU = Op(lambda: e(poll_txt(vPU, vPUA)), cost=8, tag=3)
pollO = Op(lambda: e(poll_txt(vPO, vPOA)), cost=8, tag=3)
ops += res_ops
for i in range(5):
    ops += woops[i]
ops.append(pollU)
for i in range(5, 8):
    ops += woops[i]
t = f"""v_and_b32 v230, 31, {vLANE}
v_lshrrev_b32 v231, 3, v230
v_and_b32 v230, 7, v230
v_lshlrev_b32 v{WA}, 13, v231
v_lshl_add_u32 v{WA}, v230, 8, v{WA}
v_lshl_add_u32 v{WA}, v230, 4, v{WA}
v_add_u32 v{WA}, {sW2K}, v{WA}
v_lshrrev_b32 v230, 5, {vLANE}
v_bfe_u32 v231, {vLANE}, 1, 1
v_xor_b32 v230, v230, v231
v_lshl_add_u32 v{WA}, v230, 7, v{WA}
s_and_b32 {sL1}, {sRB}, {OPT['rota']}
s_lshl_b32 {sL1}, {sL1}, 6
v_xor_b32 v{WA}, {sL1}, v{WA}
"""
for p in range(1, 8):
    t += f"v_xor_b32 v{WA+p}, {16*p}, v{WA}\n"
t += f"""v_lshrrev_b32 v218, 3, v0
v_and_b32 v219, 7, v0
v_and_b32 v230, 7, v218
v_xor_b32 v219, v219, v230
v_lshrrev_b32 v231, 3, v218
v_lshlrev_b32 v{RA}, 13, v231
v_lshl_add_u32 v{RA}, v230, 8, v{RA}
v_lshl_add_u32 v{RA}, v219, 4, v{RA}
v_bfe_u32 v231, v218, 1, 1
v_lshl_add_u32 v{RA}, v231, 7, v{RA}
v_xor_b32 v{RA+1}, 128, v{RA}
"""
txt(t)
for i in range(28):
    items.append(w2rd[i])
RES = 232
t = ""
for it_ in range(2):
    t += f"v_lshlrev_b32 v{BRES+it_}, 16, v{BRES+it_}\n"
    for k in range(4):
        t += f"v_lshlrev_b32 v{RES+8*it_+2*k}, 16, v{XRES+4*it_+k}\nv_and_b32 v{RES+8*it_+2*k+1}, 0xffff0000, v{XRES+4*it_+k}\n"
    for k in range(8):
        t += f"v_add_f32 v{RES+8*it_+k}, v{RES+8*it_+k}, v{BRES+it_}\n"
txt(t, needs=res_ops)
for i in range(4):
    items.append(word[i])
fn(lambda: stamp(15), cost=0)
it_pollU = fn(lambda: (poll_check(vPU, vPUA), stamp(16)), needs=[pollU], D=6, cost=16)


def u_pass(mt, extra):
    for i in range(28):
        par = i % 2
        pre_txt = f"s_add_u32 {sSA}, {sUB}, {i*2048}" if par == 0 else None
        slot, o = act_load(vU[mt], pre_txt, sSA, 2048 * par, [it_pollU])
        ops.append(o)
        for nt in range(2):
            items.append(mfma_item(ACC + 16 * (2 * mt + nt), vr(STG + 4 * slot, 4), ar(8 * i + 4 * nt, 4), i == 0 and mt == 1, [o], w2rd[i], slot))
        extra(i)


PO = {}
def ex1(i):
    if i == 20:
        ops.append(pollO)
        PO["it"] = fn(lambda: poll_check(vPO, vPOA), needs=[pollO], D=7, cost=16)
u_pass(1, ex1)
fn(lambda: stamp(17), cost=0)
for kk in range(8):
    for nt in range(2):
        pre_txt = f"s_add_u32 {sSOo}, {sSOo}, 4096" if (nt == 0 and kk % 2 == 0 and kk > 0) else None
        slot, o = act_load(vL16, pre_txt, sSOo, 2048 * (kk % 2) + 1024 * nt, [PO["it"]])
        ops.append(o)
        for mt in range(2):
            items.append(mfma_item(ACC + 16 * (2 * mt + nt), ar(8 * (28 + kk % 4) + 4 * mt, 4), vr(STG + 4 * slot, 4), kk == 0 and mt == 0, [o], word[kk], slot))
    if kk < 4:
        items.append(word[kk + 4])
fn(lambda: stamp(18), cost=0)


def out_write(mt, nt, j):
    return f"ds_write_b128 v{WA+4*mt+j}, {vr(ACC+16*(2*mt+nt)+4*j,4)} offset:{nt*32768}"


def ex0(i):
    if 4 <= i < 12:
        fn(lambda: e(out_write(1, (i - 4) // 4, (i - 4) % 4)), cost=0)
u_pass(0, ex0)
schedule(e, ops, items, OPT["D"], OPT["pace"], log)
stamp(8)
for nt in range(2):
    for j in range(4):
        e(out_write(0, nt, j))
e.wait_all()
e("s_barrier")
RD = 96
rs = {}
for it_ in range(2):
    for rd in range(2):
        for p in range(4):
            rs[it_, rd, p] = e(f"ds_read_b128 {vr(RD+32*it_+16*rd+4*p,4)}, v{RA+rd} offset:{it_*32768+p*2048}")
for it_ in range(2):
    for rd in range(2):
        b = RD + 32 * it_ + 16 * rd
        a = RES + 8 * it_ + 4 * rd
        e.wait_lg(rs[it_, rd, 3])
        for h2 in range(2):
            e(f"v_pk_add_f32 {vr(b+2*h2,2)}, {vr(b+2*h2,2)}, {vr(b+4+2*h2,2)}")
            e(f"v_pk_add_f32 {vr(b+8+2*h2,2)}, {vr(b+8+2*h2,2)}, {vr(b+12+2*h2,2)}")
        for h2 in range(2):
            e(f"v_pk_add_f32 {vr(a+2*h2,2)}, {vr(a+2*h2,2)}, {vr(b+2*h2,2)}")
        for h2 in range(2):
            e(f"v_pk_add_f32 {vr(a+2*h2,2)}, {vr(a+2*h2,2)}, {vr(b+8+2*h2,2)}")
        for h2 in range(2):
            e(f"v_cvt_pk_bf16_f32 v{248+4*it_+2*rd+h2}, v{a+2*h2}, v{a+2*h2+1}")
    e(f"buffer_store_dwordx4 {vr(248+4*it_,4)}, {vOA}, {srd(SOUT)}, {[sOUTO, sOUTO2][it_]} offen{['', ' sc1', ' nt'][OPT['outpol']]}")
stamp(9)
stamp_flush()
e("s_endpgm")

e.label("L_helper")
e.vm_done, e.lg_done = e.vm, e.lg
e(srdset)
sHW = sL2
e(f"s_sub_u32 {sHW}, {sJ}, 28\ns_lshl_b32 {sHW}, {sHW}, 2\ns_add_u32 {sHW}, {sHW}, {sWV}")
e(f"s_or_b32 {sT0}, {sXCD}, {sHW}\ns_cmp_lg_u32 {sT0}, 0\ns_cbranch_scc1 L_nononce")
e("s_memrealtime s[98:99]")
e.smem_wait()
e("s_or_b32 s98, s98, 1\nv_mov_b32 v19, s98\ns_mov_b64 exec, 1")
e.lines.append(f"    buffer_store_dword v19, off, {srd(SDBG)}, 0 sc1")
e("s_mov_b64 exec, -1")
e.label("L_nononce")
stamp(0)
if OPT["pf1"]:
    e(f"v_lshrrev_b32 v17, 2, {vLANE}\nv_mul_u32_u24 v17, 3584, v17\nv_and_b32 v19, 3, {vLANE}\nv_lshl_add_u32 v17, v19, 7, v17")
    e(f"s_lshr_b32 {sT1}, {sHW}, 2\ns_lshl_b32 {sT1}, {sT1}, 5\ns_add_u32 {sT1}, {sT1}, {sWV}\ns_mul_i32 {sT1}, {sT1}, {16*3584}")
    e(f"s_mul_i32 {sT3}, {sXCD}, 7\ns_lshr_b32 {sT3}, {sT3}, 1\ns_lshl_b32 {sT3}, {sT3}, 7\ns_add_u32 {sT1}, {sT1}, {sT3}")
    for k in range(OPT["pf1"]):
        e(f"buffer_load_dword v{20+k}, v17, {srd(SW1)}, {sT1} offen{' nt' if OPT['pf1nt'] else ''}\ns_add_u32 {sT1}, {sT1}, {64*3584}")
if OPT["stamps"]:
    e.wait_all(force=True)
    stamp(19)
if OPT["pf2h"]:
    e(f"v_lshrrev_b32 v17, 2, {vLANE}\nv_lshlrev_b32 v17, 12, v17\nv_and_b32 v19, 3, {vLANE}\nv_lshl_add_u32 v17, v19, 7, v17")
    e(f"s_lshr_b32 {sT1}, {sHW}, 2\ns_mul_i32 {sT1}, {sT1}, 28\ns_add_u32 {sT1}, {sT1}, {sWV}\ns_lshl_b32 {sT1}, {sT1}, 16")
    e(f"s_lshl_b32 {sT3}, {sXCD}, 9\ns_add_u32 {sT1}, {sT1}, {sT3}")
    for k in range(OPT["pf2h"]):
        e(f"buffer_load_dword v{240+k}, v17, {srd(SW2)}, {sT1} offen{' nt' if OPT['pf2nt'] else ''}\ns_add_u32 {sT1}, {sT1}, {4*65536}")
    if OPT["stamps"]:
        e.wait_all(force=True)
        stamp(20)
s = e(nonce_txt("v29"))
vTOK, vG = "v17", "v18"
vA, vOST, vVW, vVR = "v2", "v3", "v4", "v5"
vMK = ["v6", "v7", "v8", "v9"]
vNEG, vFA = "v10", "v11"
mP, mC0, mC1, mLO, mHI, mI0, mI1 = [f"s[{76+2*i}:{77+2*i}]" for i in range(7)]
sU, sQ, sK, sV, sO, sSC = "s90", "s91", "s92", "s93", "s94", "s95"
e(f"v_and_b32 {vTOK}, 15, {vLANE}\nv_lshrrev_b32 {vG}, 4, {vLANE}")
e(f"v_lshrrev_b32 {vFA}, 3, {vLANE}\nv_min_u32 {vFA}, 4, {vFA}\ns_lshl_b32 {sT0}, {sXCD}, 2\ns_sub_u32 {sT0}, {sT0}, 1")
e(f"v_add_u32 {vFA}, {sT0}, {vFA}\nv_max_i32 {vFA}, 0, {vFA}\nv_and_b32 v13, 7, {vLANE}\nv_min_u32 v13, 6, v13")
e(f"v_lshl_add_u32 {vFA}, {vFA}, 3, v13\nv_lshlrev_b32 {vFA}, 7, {vFA}\nv_add_u32 {vFA}, {FLQ}, {vFA}")
e(f"v_lshlrev_b32 {vA}, 15, {vG}\nv_lshl_add_u32 {vA}, {vTOK}, 4, {vA}")
e(f"v_lshrrev_b32 v13, 1, {vG}\nv_lshlrev_b32 {vOST}, 11, v13\nv_and_b32 v13, 1, {vG}\nv_lshl_add_u32 {vOST}, v13, 9, {vOST}\nv_lshl_add_u32 {vOST}, {vTOK}, 4, {vOST}")
e(f"v_add_u32 {vVW}, {sW2K}, {vL16}")
e(f"v_and_b32 v13, 3, {vLANE}\nv_lshlrev_b32 {vVR}, 8, v13\nv_lshrrev_b32 v13, 2, {vLANE}\nv_lshl_add_u32 {vVR}, v13, 4, {vVR}\nv_add_u32 {vVR}, {sW2K}, {vVR}")
e(f"v_and_b32 v13, 1, {vTOK}\nv_cmp_eq_u32 {mP}, 1, v13\nv_lshl_add_u32 v13, {vG}, 2, v13")
e(f"v_cmp_le_u32 {mC0}, v13, {vTOK}\nv_add_u32 v13, 2, v13\nv_cmp_le_u32 {mC1}, v13, {vTOK}")
e(f"v_mov_b32 v13, 0xffff\nv_mov_b32 v14, 0xffff0000\nv_cndmask_b32 v13, v13, v14, {mP}")
e(f"v_cndmask_b32 {vMK[0]}, v13, 0, {mC0}\nv_cndmask_b32 {vMK[1]}, v13, 0, {mC1}")
e(f"v_cndmask_b32 {vMK[2]}, 0, v13, {mC0}\nv_cndmask_b32 {vMK[3]}, 0, v13, {mC1}")
SC = (28 ** -0.5) * math.log2(math.e)
e(f"s_mov_b32 {sSC}, {f32(SC)}\nv_mov_b32 {vNEG}, {f32(-1e30)}")
e(f"s_bitcmp1_b32 {sHW}, 0\ns_cselect_b32 s82, 0xffff, 0\ns_mov_b32 s83, 0\ns_mov_b32 s84, 0\ns_cselect_b32 s85, 0, 0xffff0000")
e(f"s_cmp_eq_u32 {sXCD}, 0\ns_cselect_b32 {sT3}, 0, 256\ns_cselect_b64 {mI0}, -1, 0")
e(f"s_andn2_b64 {mI1}, {mI0}, {mC1}\ns_andn2_b64 {mI0}, {mI0}, {mC0}")
e(f"s_mul_i32 {sQ}, {sHW}, 7\ns_lshr_b32 {sQ}, {sQ}, 1\ns_lshl_b32 {sQ}, {sQ}, 15\ns_lshl_b32 {sT1}, {sXCD}, 12")
e(f"s_add_u32 {sQ}, {sQ}, {sT1}\ns_add_u32 {sQ}, {sQ}, {QKV}\ns_add_u32 {sK}, {sQ}, {56*32768}\ns_add_u32 {sV}, {sQ}, {112*32768}")
e(f"s_lshl_b32 {sO}, {sXCD}, 18\ns_lshl_b32 {sT1}, {sHW}, 12\ns_add_u32 {sO}, {sO}, {sT1}\ns_add_u32 {sO}, {sO}, {OF}")
e.wait_vm(s)
nonce_check("v29")
ps = e(poll_txt("v29", vFA))
e.wait_vm(ps)
poll_check("v29", vFA)
stamp(10)
STA = 96
KP, VH = 192, 196
SR, VT, PR, OR_, OP, TT = 32, 48, 60, 68, 84, 200


def attn_loads(r):
    b = STA + 24 * (r % 4)
    last = None
    for j, so in enumerate((sQ, sK, sV)):
        for qt in range(2):
            last = e(f"buffer_load_dwordx4 {vr(b+8*j+4*qt,4)}, {vA}, {srd(SWS)}, {so} offen offset:{512*(r%4)+256*qt} sc1")
    return last


e(f"s_sub_u32 {sT0}, {sK}, {sT3}\ns_sub_u32 {sT1}, {sV}, {sT3}")
e(f"buffer_load_dwordx4 {vr(KP,4)}, {vA}, {srd(SWS)}, {sT0} offen sc1")
hv = e(f"buffer_load_dwordx4 {vr(VH,4)}, {vA}, {srd(SWS)}, {sT1} offen sc1")
for r in range(2):
    attn_loads(r)
e.wait_vm(hv)
e(f"ds_write_b128 {vVW}, {vr(VH,4)}")
for T_ in range(2):
    e(f"ds_read_b64_tr_b16 {vr(VT+6*T_+4,2)}, {vVR} offset:{8*T_}")
e(f"s_mov_b32 {sU}, 0")
e.lines.append("    s_waitcnt vmcnt(6) lgkmcnt(0)")
e.label("L_attn_loop")
Q2 = range(2)
def T(qt, k): return f"v{TT+8*qt+k}"
for r in range(4):
    b = STA + 24 * r
    QR, KR, VR = b, b + 8, b + 16
    e.lines.append("    s_waitcnt vmcnt(8)")
    for T_ in range(2):
        e(f"v_mov_b32 v{VT+6*T_}, v{VT+6*T_+4}\nv_mov_b32 v{VT+6*T_+1}, v{VT+6*T_+5}")
    for kt in range(2):
        e(f"ds_write_b128 {vVW}, {vr(VR+4*kt,4)} offset:{1024*kt}")
    for qt in Q2:
        for k in range(4):
            e(f"v_cndmask_b32 v{QR+4*qt+k}, v{QR+4*qt+k}, 0, {mLO if k < 2 else mHI}")
    for T_ in range(2):
        for kt in range(2):
            vtr = e(f"ds_read_b64_tr_b16 {vr(VT+6*T_+2+2*kt,2)}, {vVR} offset:{1024*kt+8*T_}")
    kprev = KP if r == 0 else (b - 24 + 12)
    e(f"v_mfma_f32_16x16x32_bf16 {vr(SR,4)}, {vr(kprev,4)}, {vr(QR,4)}, 0")
    e(f"v_mfma_f32_16x16x32_bf16 {vr(SR+4,4)}, {vr(KR,4)}, {vr(QR,4)}, 0")
    e(f"v_mfma_f32_16x16x32_bf16 {vr(SR+8,4)}, {vr(KR,4)}, {vr(QR+4,4)}, 0")
    e(f"v_mfma_f32_16x16x32_bf16 {vr(SR+12,4)}, {vr(KR+4,4)}, {vr(QR+4,4)}, 0")
    if r == 3:
        for k in range(4):
            e(f"v_mov_b32 v{KP+k}, v{KR+4+k}")
    if r == 2:
        e(f"s_cmp_eq_u32 {sU}, 0\ns_cselect_b32 {sT0}, 2048, 0\ns_add_u32 {sQ}, {sQ}, {sT0}\ns_add_u32 {sK}, {sK}, {sT0}\ns_add_u32 {sV}, {sV}, {sT0}")
    attn_loads(r + 2)
    for qt in Q2:
        Pv, Cv = SR + 8 * qt, SR + 8 * qt + 4
        e(f"v_cndmask_b32 {T(qt,0)}, v{Pv}, v{Pv+1}, {mP}\nv_cndmask_b32 {T(qt,1)}, v{Pv+2}, v{Pv+3}, {mP}")
        e(f"v_cndmask_b32 {T(qt,2)}, v{Cv}, v{Cv+1}, {mP}\nv_cndmask_b32 {T(qt,3)}, v{Cv+2}, v{Cv+3}, {mP}")
        e(f"v_cndmask_b32 {T(qt,0)}, {T(qt,0)}, {T(qt,2)}, {mC0}\nv_cndmask_b32 {T(qt,1)}, {T(qt,1)}, {T(qt,3)}, {mC1}")
    if r == 0:
        e(f"v_cndmask_b32 {T(0,0)}, {T(0,0)}, {vNEG}, {mI0}\nv_cndmask_b32 {T(0,1)}, {T(0,1)}, {vNEG}, {mI1}")
        e(f"s_mov_b64 {mI0}, 0\ns_mov_b64 {mI1}, 0")
    def xreduce(op, rr):
        for sw in ("v_permlane16_swap_b32", "v_permlane32_swap_b32"):
            for qt in Q2: e(f"v_mov_b32 {T(qt,rr+1)}, {T(qt,rr)}")
            for qt in Q2: e(f"{sw} {T(qt,rr)}, {T(qt,rr+1)}")
            for qt in Q2: e(f"{op} {T(qt,rr)}, {T(qt,rr)}, {T(qt,rr+1)}")
    for qt in Q2: e(f"v_max_f32 {T(qt,2)}, {T(qt,0)}, {T(qt,1)}")
    xreduce("v_max_f32", 2)
    for qt in Q2:
        e(f"v_sub_f32 {T(qt,0)}, {T(qt,0)}, {T(qt,2)}\nv_sub_f32 {T(qt,1)}, {T(qt,1)}, {T(qt,2)}")
    for qt in Q2:
        e(f"v_mul_f32 {T(qt,0)}, {sSC}, {T(qt,0)}\nv_mul_f32 {T(qt,1)}, {sSC}, {T(qt,1)}")
    for qt in Q2:
        e(f"v_exp_f32 {T(qt,0)}, {T(qt,0)}\nv_exp_f32 {T(qt,1)}, {T(qt,1)}")
    for qt in Q2: e(f"v_add_f32 {T(qt,2)}, {T(qt,0)}, {T(qt,1)}")
    xreduce("v_add_f32", 2)
    for qt in Q2: e(f"v_rcp_f32 {T(qt,2)}, {T(qt,2)}")
    for qt in Q2:
        e(f"v_mul_f32 {T(qt,0)}, {T(qt,0)}, {T(qt,2)}\nv_mul_f32 {T(qt,1)}, {T(qt,1)}, {T(qt,2)}")
    for qt in Q2:
        e(f"v_cvt_pk_bf16_f32 {T(qt,0)}, {T(qt,0)}, {T(qt,0)}\nv_cvt_pk_bf16_f32 {T(qt,1)}, {T(qt,1)}, {T(qt,1)}")
    for qt in Q2:
        for k in range(4):
            e(f"v_and_b32 v{PR+4*qt+k}, {T(qt,k%2)}, {vMK[k]}")
    e.wait_lg(vtr)
    for qt in Q2:
        for Tt in range(2):
            e(f"v_mfma_f32_16x16x32_bf16 {vr(OR_+8*qt+4*Tt,4)}, {vr(VT+6*Tt+2*qt,4)}, {vr(PR+4*qt,4)}, 0")
    for qt in Q2:
        for k in range(4):
            e(f"v_cvt_pk_bf16_f32 v{OP+4*qt+k}, v{OR_+8*qt+2*k}, v{OR_+8*qt+2*k+1}")
        for k in range(4):
            e(f"v_cndmask_b32 v{OP+4*qt+k}, v{OP+4*qt+k}, 0, {mLO if k < 2 else mHI}")
        e(f"buffer_store_dwordx4 {vr(OP+4*qt,4)}, {vOST}, {srd(SWS)}, {sO} offen offset:{1024*(r%2)+256*qt} sc1")
    if r % 2 == 1:
        e(f"s_add_u32 {sO}, {sO}, 65536")
    e.vm_done = e.vm
e(f"s_add_u32 {sU}, {sU}, 1\ns_cmp_lt_u32 {sU}, 2\ns_cbranch_scc1 L_attn_loop")
e.wait_all(force=True)
e("s_barrier")
e(f"s_sub_u32 {sT1}, {sJ}, 28")
publish(flagcalc(sXCD, 3, sT1, FLO))
stamp(11)
stamp_flush(True)
e.label("L_end")
e("s_endpgm")
e.label("L_nop2")
e.wait_all(force=True)
e("s_barrier")
publish(flagcalc(sRB, 3, sCB, FLQ))
e(f"s_and_b32 {sL2}, {sRB}, 3\ns_cbranch_scc0 L_p3alt")
e(f"s_sub_u32 {sL2}, {sL2}, 1")
if OPT["pf2"]:
    e(f"v_lshrrev_b32 v17, 2, {vLANE}\nv_lshlrev_b32 v17, 12, v17\nv_and_b32 v18, 3, {vLANE}\nv_lshl_add_u32 v17, v18, 7, v17")
    e(f"s_mul_i32 {sT1}, {sWV}, 28\ns_add_u32 {sT1}, {sT1}, {sL2}\ns_add_u32 {sT1}, {sT1}, {4*OPT['pf2h']}\ns_lshl_b32 {sT1}, {sT1}, 16\ns_lshl_b32 {sT3}, {sXCD}, 9\ns_add_u32 {sT1}, {sT1}, {sT3}")
    for k in range(-(-(28 - 4 * OPT["pf2h"]) // 3)):
        e(f"buffer_load_dword v{96+k}, v17, {srd(SW2)}, {sT1} offen{' nt' if OPT['pf2nt'] else ''}\ns_add_u32 {sT1}, {sT1}, {3*65536}")
if OPT["pfo"]:
    e(f"v_lshlrev_b32 v17, 7, {vLANE}\ns_lshl_b32 {sT1}, {sL2}, 2\ns_add_u32 {sT1}, {sT1}, {sWV}\ns_mul_i32 {sT1}, {sT1}, {262*128}")
    for k in range(5):
        e(f"buffer_load_dword v{112+k}, v17, {srd(SWO)}, {sT1} offen\ns_add_u32 {sT1}, {sT1}, {50*128}")
if OPT["stamps"]:
    e.wait_all(force=True)
    stamp(21)
e.label("L_p3alt")
for x in log[:JOIN["n"]]:
    if x.tag == 3:
        if isinstance(x, Op):
            x.seq = x.fn()
        else:
            if x.needs:
                e.wait_vm(max(o.seq for o in x.needs))
            x.fn()
e.wait_all(force=True)
e("s_branch L_p3join")
e.label("L_codeend")

body, nn = pad_hazards(e.lines)
ref = open(os.path.join(os.path.dirname(os.path.abspath(__file__)), "..", NAME + ".s.ref")).read().split("\n")
hdr = [l for l in ref if l.startswith(";") and "@launch" not in l and not l.startswith("; Override") and not l.startswith("; grid=ceil")]
out = hdr + ["; @launch grid=(256,1,1) block=(256,1,1) lds=163840",
             "; generated by tools/gen.py (hand-written generator); options: " + " ".join(f"{k}={v}" for k, v in OPT.items()),
             '.amdgcn_target "amdgcn-amd-amdhsa--gfx950"', ".text", f".globl {NAME}_kernel", ".p2align 8",
             f".type {NAME}_kernel,@function", f"{NAME}_kernel:"] + body + [
    '.section .rodata,"a"', ".p2align 6", f".amdhsa_kernel {NAME}_kernel",
    "  .amdhsa_next_free_vgpr 512", "  .amdhsa_next_free_sgpr 102", "  .amdhsa_accum_offset 256",
    "  .amdhsa_group_segment_fixed_size 0", "  .amdhsa_kernarg_size 88", "  .amdhsa_user_sgpr_count 2",
    "  .amdhsa_user_sgpr_kernarg_segment_ptr 1", "  .amdhsa_system_sgpr_workgroup_id_x 1",
    "  .amdhsa_float_denorm_mode_32 3", ".end_amdhsa_kernel", ""]
open(sys.argv[1], "w").write("\n".join(out))
print(f"wrote {sys.argv[1]}: {len(body)} lines, {nn} s_nop pads")
```

```python
import sys, re
NAME = "parallel_sum__sliding_local_dilated__mixer_token_mlp__prompt"
src, dst, mode = sys.argv[1:4]
s = open(src).read()
def kd(name, v=32):
    return f""".amdhsa_kernel {name}
  .amdhsa_next_free_vgpr {v}
  .amdhsa_next_free_sgpr 32
  .amdhsa_accum_offset {v}
  .amdhsa_group_segment_fixed_size 0
  .amdhsa_kernarg_size 88
  .amdhsa_user_sgpr_count 2
  .amdhsa_user_sgpr_kernarg_segment_ptr 1
  .amdhsa_system_sgpr_workgroup_id_x 1
.end_amdhsa_kernel
"""
main = f"; @launch kernel={NAME}_kernel grid=(256,1,1) block=(256,1,1) lds=163840"
A = """.p2align 8
.type a_kernel,@function
a_kernel:
    s_memrealtime s[8:9]
    s_cmp_ge_u32 s2, 1
    s_cbranch_scc1 L_aend
    s_load_dwordx2 s[4:5], s[0:1], 80
    s_mov_b32 s6, 0x1000000
    s_mov_b32 s7, 0x20000
    s_mov_b32 s10, 0xE00000
    s_waitcnt lgkmcnt(0)
    v_mov_b32 v1, s8
    buffer_store_dword v1, off, s[4:7], s10 sc1
L_aend:
    s_endpgm
"""
def C(off):
    return f""".p2align 8
.type c_kernel,@function
c_kernel:
    s_cmp_ge_u32 s2, 1
    s_cbranch_scc1 L_cend
    s_load_dwordx2 s[4:5], s[0:1], 80
    s_mov_b32 s6, 0x1000000
    s_mov_b32 s7, 0x20000
    s_mov_b32 s10, {off}
    s_waitcnt lgkmcnt(0)
    buffer_load_dword v1, off, s[4:7], s10 sc1
    s_waitcnt vmcnt(0)
    v_readfirstlane_b32 s12, v1
    s_nop 3
    s_add_u32 s12, s12, 6000
L_chold:
    s_memrealtime s[8:9]
    s_waitcnt lgkmcnt(0)
    s_sub_u32 s8, s12, s8
    s_cmp_lt_u32 s8, 30000
    s_cbranch_scc1 L_chold
L_cend:
    s_endpgm
"""
E = """.p2align 8
.type e_kernel,@function
e_kernel:
    s_endpgm
"""
la = "; @launch kernel=a_kernel grid=(1,1,1) block=(64,1,1) lds=0"
lc = "; @launch kernel=c_kernel grid=(1,1,1) block=(64,1,1) lds=0"
le = "; @launch kernel=e_kernel grid=(1,1,1) block=(64,1,1) lds=0"
if mode == "amc":
    L, code, kds = [la, main, lc], A + C("0xE00000"), kd("a_kernel") + ".p2align 6\n" + kd("c_kernel")
elif mode == "mc":
    L, code, kds = [main, lc], C("0xC00000"), kd("c_kernel")
elif mode == "me":
    L, code, kds = [main, le], E, kd("e_kernel")
elif mode == "em":
    L, code, kds = [le, main], E, kd("e_kernel")
elif mode == "m":
    L, code, kds = [main], "", ""
s = re.sub(r"; @launch grid.*", "\n".join(L), s)
s = s.replace('.section .rodata,"a"', code + '.section .rodata,"a"')
s += ".p2align 6\n" + kds
open(dst, "w").write(s)
```

```python
import re

REG_RE = re.compile(r"\b([vas])(\d+)\b|\b([vas])\[(\d+):(\d+)\]|\b(vcc|exec|m0|scc)\b")


def regs_of(tok):
    out = set()
    for m in REG_RE.finditer(tok):
        if m.group(1):
            out.add((m.group(1), int(m.group(2))))
        elif m.group(3):
            for i in range(int(m.group(4)), int(m.group(5)) + 1):
                out.add((m.group(3), i))
        else:
            out.add((m.group(6), 0))
    return out


def split_ops(s):
    ops, depth, cur = [], 0, ""
    for ch in s:
        if ch == "[":
            depth += 1
        if ch == "]":
            depth -= 1
        if ch == "," and depth == 0:
            ops.append(cur.strip())
            cur = ""
        else:
            cur += ch
    if cur.strip():
        ops.append(cur.strip())
    return ops


TRANS = ("v_exp_f32", "v_log_f32", "v_rcp_f32", "v_rsq_f32", "v_sqrt_f32", "v_sin_f32", "v_cos_f32")
NO_DST_SALU = ("s_cmp", "s_waitcnt", "s_barrier", "s_branch", "s_cbranch", "s_endpgm", "s_nop", "s_sleep", "s_setprio",
               "s_bitcmp")


class Ins:
    def __init__(self, text):
        self.text = text
        t = text.split(";")[0].strip()
        self.label = t.endswith(":")
        self.op = ""
        self.w, self.r = set(), set()
        self.kind = None
        if self.label or not t or t.startswith("."):
            return
        parts = t.split(None, 1)
        op = self.op = parts[0]
        rest = parts[1] if len(parts) > 1 else ""
        rest_nm = re.sub(r"\b(op_sel|op_sel_hi|neg_lo|neg_hi|quad_perm):\[[^\]]*\]", "", rest)
        ops = split_ops(rest_nm)
        self.ops = ops
        R = [regs_of(o) for o in ops]
        allr = set().union(*R) if R else set()
        self.dpp = "quad_perm" in rest or "row_" in rest
        if op.startswith("v_mfma"):
            self.kind = "mfma"
            self.w = R[0]
            self.a, self.b, self.c = R[1], R[2], R[3]
            self.r = R[1] | R[2] | R[3]
            self.passes = 8 if "32x32" in op else 4
        elif op.startswith("v_"):
            self.kind = "valu"
            if op.startswith("v_permlane") and "swap" in op:
                self.w = R[0] | R[1]
                self.r = R[0] | R[1]
            elif op.startswith("v_cmp"):
                self.w = R[0]
                self.r = set().union(*R[1:])
            elif "_co_" in op:
                self.w = R[0] | R[1]
                self.r = set().union(*R[2:])
            else:
                self.w = R[0]
                self.r = set().union(*R[1:]) if len(R) > 1 else set()
                if op.startswith(("v_fmac", "v_dot2c", "v_writelane")):
                    self.r |= R[0]
        elif op.startswith("ds_"):
            self.kind = "ds"
            if op.startswith("ds_read"):
                self.w = R[0]
                self.r = set().union(*R[1:])
            else:
                self.r = allr
        elif op.startswith(("buffer_", "global_")):
            self.kind = "vmem"
            self.lds = bool(re.search(r"\blds\b", rest))
            if "load" in op and not self.lds:
                self.w = R[0]
                self.r = set().union(*R[1:])
            else:
                self.r = allr
                if self.lds:
                    self.r = self.r | {("m0", 0)}
            self.wide_store = "store" in op and ("x4" in op or "x3" in op)
            if self.wide_store:
                self.sdata = R[0] if op.startswith("buffer_") else R[1]
        elif op.startswith("s_"):
            self.kind = "salu"
            if op.startswith(NO_DST_SALU):
                self.r = allr
            else:
                self.w = R[0]
                self.r = set().union(*R[1:]) if len(R) > 1 else set()
        else:
            raise ValueError("unknown instr " + text)

    def states(self):
        if self.op == "s_nop":
            return int(self.ops[0], 0) + 1
        return 1 if self.kind else 0


def vec(s):
    return {x for x in s if x[0] in "va"and x[0] != "vcc"}


def sca(s):
    return {x for x in s if x[0] in ("s", "vcc")}


def required(p, c):
    need = 0
    if p.kind == "valu":
        wv, ws = vec(p.w), sca(p.w)
        if c.kind == "mfma" and wv & c.r:
            need = max(need, 2)
        if c.kind == "valu":
            if p.op.startswith(TRANS) and wv & c.r:
                need = max(need, 1)
            if p.op.startswith("v_dot") and wv & (c.r | c.w):
                same = c.op == p.op
                srcs = set().union(*[regs_of(o) for o in c.ops[1:3]])
                if not same or (wv & srcs):
                    need = max(need, 3)
            if c.dpp and wv & c.r:
                need = max(need, 2)
            if c.op.startswith("v_permlane") and wv & c.r:
                need = max(need, 2)
            if c.op.startswith(("v_readlane", "v_readfirstlane")) and wv & vec(c.r):
                need = max(need, 1)
            if ws & sca(c.r):
                need = max(need, 4 if c.op.startswith(("v_readlane", "v_writelane")) else 2)
        if c.kind in ("vmem", "ds") and p.op.startswith("v_dot") and wv & c.r:
            need = max(need, 3)
        if c.kind == "vmem" and ws & sca(c.r):
            need = max(need, 5)
        if c.kind == "salu" and ws & sca(c.r):
            need = max(need, 1)
        if c.op.startswith("s_cbranch_vcc") and ("vcc", 0) in ws:
            need = max(need, 1)
    if p.kind == "salu":
        if ("m0", 0) in p.w and c.kind == "vmem" and c.lds:
            need = max(need, 1)
    if p.kind == "vmem" and p.wide_store:
        if c.kind in ("valu", "mfma", "ds", "vmem") and p.sdata & c.w:
            need = max(need, 2)
    if p.kind == "mfma":
        k = {4: 0, 8: 1}[p.passes]
        if c.kind == "mfma":
            if p.w & (c.a | c.b):
                need = max(need, [8, 12][k])
            if p.w & c.c and not (p.w == c.c and p.passes == c.passes):
                need = max(need, [6, 10][k])
            if p.w & c.w and not (p.w & c.c):
                need = max(need, [8, 12][k])
        elif c.kind in ("valu", "ds", "vmem"):
            if p.w & (c.r | c.w):
                need = max(need, [8, 12][k])
            if c.kind == "valu" and p.c & c.w:
                need = max(need, [3, 7][k])
    return need


def pad_hazards(lines):
    ins = [Ins(t) for t in lines]
    labels = {}
    for i, x in enumerate(ins):
        if x.label:
            labels[x.text.split(":")[0].strip()] = i
    preds_branch = {}
    for i, x in enumerate(ins):
        if x.op.startswith(("s_branch", "s_cbranch")):
            t = labels[x.ops[0]]
            preds_branch.setdefault(t, []).append(i)
    pad = [0] * len(ins)

    def scan(c, i, dist, seen):
        need = 0
        j = i - 1
        while j >= 0 and dist < 20:
            x = ins[j]
            if x.label:
                for b in preds_branch.get(j, []):
                    if (b, dist) not in seen:
                        seen.add((b, dist))
                        need = max(need, scan(c, b + 1, dist, seen))
                k = j - 1
                while k >= 0 and not ins[k].kind and not ins[k].label:
                    k -= 1
                if k >= 0 and ins[k].op in ("s_branch", "s_endpgm"):
                    return need
            elif x.kind:
                need = max(need, required(x, c) - dist)
                dist += x.states() + pad[j]
            j -= 1
        return need

    for i, c in enumerate(ins):
        if c.kind:
            pad[i] = max(0, scan(c, i, 0, set()))
    out = []
    nn = 0
    for i, c in enumerate(ins):
        p = pad[i]
        while p > 0:
            k = min(p, 16)
            out.append(f"    s_nop {k-1}")
            nn += 1
            p -= k
        out.append(c.text)
    return out, nn


class Emit:
    def __init__(self):
        self.lines = []
        self.vm = 0
        self.vm_done = 0
        self.lg = 0
        self.lg_done = 0

    def __call__(self, text):
        seq = None
        for t in text.split("\n"):
            t = t.strip()
            if not t:
                continue
            op = t.split()[0]
            if op.startswith(("buffer_", "global_")):
                if self.vm - self.vm_done >= 63:
                    self.wait_vm(self.vm - 63)
                seq = self.vm
                self.vm += 1
            elif op.startswith("ds_"):
                seq = self.lg
                self.lg += 1
            self.lines.append(t if t.endswith(":") else "    " + t)
        return seq

    def label(self, l):
        self.lines.append(l + ":")

    def wait(self, vm=None, lg=None):
        parts = []
        if vm is not None and vm >= self.vm_done:
            n = self.vm - vm - 1
            assert n <= 63
            parts.append(f"vmcnt({n})")
            self.vm_done = vm + 1
        if lg is not None and lg >= self.lg_done:
            n = self.lg - lg - 1
            if n > 15:
                n = 15
                lg = self.lg - 16
            parts.append(f"lgkmcnt({n})")
            self.lg_done = lg + 1
        if parts:
            self.lines.append("    s_waitcnt " + " ".join(parts))

    def wait_vm(self, seq):
        self.wait(vm=seq)

    def wait_lg(self, seq):
        self.wait(lg=seq)

    def wait_all(self, force=False):
        if force:
            self.lines.append("    s_waitcnt vmcnt(0) lgkmcnt(0)")
            self.vm_done, self.lg_done = self.vm, self.lg
        else:
            self.wait(vm=self.vm - 1 if self.vm else None, lg=self.lg - 1 if self.lg else None)

    def smem_wait(self):
        self.lines.append("    s_waitcnt lgkmcnt(0)")
        self.lg_done = self.lg


class Op:
    def __init__(self, fn, after=(), tag=None, cost=None):
        self.fn, self.after, self.seq, self.tag, self.cost = fn, list(after), None, tag, cost


class Item:
    def __init__(self, fn, needs=(), cost=4, D=None, tag=None, issued=(), pace=None, pre=0, after=(), strict=False,
                 bgon=None):
        self.fn, self.needs, self.cost, self.D, self.tag, self.done = fn, list(needs), cost, D, tag, False
        self.issued, self.pace, self.pre, self.after, self.strict = list(issued), pace, pre, list(after), strict
        self.bgon = bgon


def schedule(e, ops, items, bg, D, PACE, DBG, log=None):
    idx = {id(o): i for i, o in enumerate(ops)}
    assert len(idx) == len(ops)
    bgidx = {id(b): i for i, b in enumerate(bg)}
    st = dict(io=0, ii=0, ib=0, t=10 ** 9, pace=PACE, bgon=True, lastbg=False)

    def emit_item(it):
        seqs = [o.seq for o in it.needs]
        if seqs:
            e.wait_vm(max(seqs))
        it.fn()
        it.done = True
        if log is not None:
            log.append(it)
        if it.pace is not None:
            st["pace"] = it.pace
        if it.bgon is not None:
            st["bgon"] = it.bgon
        st["t"] += it.cost

    def emit_op():
        o = ops[st["io"]]
        o.seq = o.fn()
        if log is not None:
            log.append(o)
        st["io"] += 1
        if st["ii"] < len(items) and items[st["ii"]].pre > 0:
            items[st["ii"]].pre -= 1
        if o.cost is None:
            st["t"] = min(max(0, st["t"] - st["pace"]), st["pace"] // 2)
        else:
            st["t"] = st["pace"] - o.cost

    while st["io"] < len(ops) or st["ii"] < len(items) or st["ib"] < len(bg):
        io, ii, ib = st["io"], st["ii"], st["ib"]
        b = bg[ib] if ib < len(bg) else None
        b_need = max([idx[id(o)] for o in b.needs], default=-1) if b else None
        b_ok = b is not None and b_need < io and all(a.done for a in b.after)
        it = items[ii] if ii < len(items) else None
        can_op = io < len(ops) and all(a.done for a in ops[io].after)
        op_on_bg = io < len(ops) and not can_op and all(a.done or id(a) in bgidx for a in ops[io].after)
        it_on_bg = it is not None and any(not a.done for a in it.after)
        if it is not None:
            need = max([idx[id(o)] for o in it.needs], default=-1)
            must = max([idx[id(o)] for o in it.issued] + [need])
            dist = D if it.D is None else it.D
            want_op = ((need >= 0 and io <= need + dist) or io <= must or it.pre > 0 or
                       (st["t"] >= st["pace"] and not it.strict))
            if it_on_bg and b is not None and io <= b_need + DBG:
                want_op = True
        else:
            want_op = True
        ripe = b_ok and io > b_need + DBG and st["bgon"]
        if ripe and not st["lastbg"]:
            emit_item(b); st["ib"] += 1; st["lastbg"] = True
        elif can_op and want_op:
            emit_op(); st["lastbg"] = False
        elif b_ok and (it is None or it_on_bg or (op_on_bg and want_op and (st["bgon"] or io <= must))):
            emit_item(b); st["ib"] += 1; st["lastbg"] = True
        else:
            assert it is not None, "deadlock in schedule"
            assert must < io, "item needs an op that cannot be issued"
            assert not it_on_bg, "item waits for a background item that cannot be emitted"
            emit_item(it); st["ii"] += 1; st["lastbg"] = False
```

```python
import sys, os, math, struct
sys.path.insert(0, os.path.dirname(os.path.abspath(__file__)))
from asmlib import Emit, Op, Item, schedule, pad_hazards

NAME = "parallel_sum__sliding_local_dilated__mixer_token_mlp__prompt"
OPT = dict(stamps=0, D=10, DBG=10, pace=64, mimic=1, spin=20000, outpol=0, n1=4, n1a=4, pre=10, pace3=40,
           pad=1280, G=8, php=12, pup=10, lD=8, tw2=0, two=0, diag=-1, diagc=0, ab=0, fs=5, rdl=1, wst=3, xa=0, lpa=2, mp=3, Da=10, rot2=1, wt=1, lDa=28, xpos=9, bt=0, apre=9)
for a in sys.argv[2:]:
    k, v = a.split("=")
    assert k in OPT, k
    OPT[k] = int(v)


def f32(x):
    return "0x%08x" % struct.unpack("<I", struct.pack("<f", x))[0]


HF, UF, OF, XF, FL = 0x000000, 0x200000, 0x400000, 0x600000, 0xC00000
FLL, FLU, FLO = FL, FL + 0x20000, FL + 0x30000
STAMP = 0xD00000
WS_BYTES = 0x1000000
HS = 65536 + OPT["pad"]
US = 57344 + OPT["pad"]
OOB = 0x7F000000
FS = OPT["fs"]

SX, SW, SWO, SW1, SW2, SWS, SOUT, SB1, SB2, SDBG = [4 * i for i in range(1, 11)]
def srd(b): return f"s[{b}:{b+3}]"
sWV, sXCD, sJ, sNON = "s44", "s45", "s46", "s47"
sS3, sK3 = "s48", "s49"
sFT, sDT = "s50", "s51"
sW4K = "s52"
sT0, sT1, sT2, sT3 = "s53", "s54", "s55", "s56"
sSO, sSA, sCNT, sPT, sMSK, sONES = "s57", "s58", "s59", "s60", "s61", "s62"
sH0, sH1 = "s63", "s64"
sROT, sAB, sUST = "s65", "s66", "s67"
sST = 96

vLANE, vL16 = "v1", "v23"
e = Emit()


def vr(b, n=1):
    return f"v{b}" if n == 1 else f"v[{b}:{b+n-1}]"


def ar(b, n=1):
    return f"a{b}" if n == 1 else f"a[{b}:{b+n-1}]"


lbl_n = [0]
def newlbl(p):
    lbl_n[0] += 1
    return f"L_{p}{lbl_n[0]}"


def stamp(idx):
    if OPT["diag"] >= 0 and idx == OPT["diag"]:
        e("s_memrealtime s[100:101]")
        e.smem_wait()
    if not OPT["stamps"]:
        return
    e(f"s_memrealtime s[{sST}:{sST+1}]\ns_memtime s[{sST+2}:{sST+3}]")
    e.smem_wait()
    e(f"v_writelane_b32 v31, s{sST}, {idx}\nv_writelane_b32 v31, s{sST+2}, {32+idx}")


def stamp_flush():
    if not OPT["stamps"]:
        return
    e(f"s_lshl2_add_u32 {sT0}, s2, {sWV}\ns_lshl_b32 {sT0}, {sT0}, 8\ns_add_u32 {sT0}, {sT0}, {STAMP}")
    e(f"v_lshlrev_b32 v30, 2, {vLANE}")
    e(f"buffer_store_dword v31, v30, {srd(SWS)}, {sT0} offen")


class Sched:
    def __init__(self):
        self.ops, self.items, self.bg = [], [], []

    def txt(self, text, **kw):
        atomic = kw.pop("atomic", False)
        lines = [t for t in text.split("\n") if t.strip()]
        step = len(lines) if atomic else 4
        last = None
        for i in range(0, len(lines), step):
            chunk = "\n".join(lines[i:i + step])
            last = Item(lambda c=chunk: e(c), cost=4 * len(lines[i:i + step]), **kw)
            self.items.append(last)
            kw.pop("needs", None)
            kw.pop("issued", None)
        return last

    def fn(self, f, **kw):
        it = Item(f, **kw)
        self.items.append(it)
        return it

    def run(self):
        schedule(e, self.ops, self.items, self.bg, OPT["D"], OPT["pace"], OPT["DBG"])


def spin_until(load_txt, cmp_txt):
    l0, l1 = newlbl("spin"), newlbl("ok")
    e(cmp_txt)
    e(f"s_cbranch_vccz {l1}")
    e(f"s_mov_b32 {sCNT}, {OPT['spin']}")
    e.label(l0)
    e.lines.append("    " + load_txt)
    e.lines.append("    s_waitcnt vmcnt(0)")
    e(cmp_txt)
    e(f"s_cbranch_vccz {l1}")
    e(f"s_sub_u32 {sCNT}, {sCNT}, 1")
    e(f"s_cbranch_scc0 {l0}")
    e.label(l1)


def nonce_txt(v):
    return f"buffer_load_dword {v}, off, {srd(SDBG)}, 0 sc1"


def nonce_check(v):
    spin_until(nonce_txt(v), f"v_cmp_eq_u32 vcc, 0, {v}")
    e(f"v_readfirstlane_b32 {sNON}, {v}")


def poll_txt(vdst, vaddr):
    return f"buffer_load_dword {vdst}, {vaddr}, {srd(SWS)}, 0 offen sc1"


def poll_check(vdst, vaddr):
    spin_until(poll_txt(vdst, vaddr), f"v_cmp_ne_u32 vcc, {sNON}, {vdst}")


def publish(calc):
    l = newlbl("nopub")
    e(f"s_cmp_lg_u32 {sWV}, 0")
    e(f"s_cbranch_scc1 {l}")
    e(calc)
    e(f"v_mov_b32 v30, {sNON}")
    e("s_mov_b64 exec, 1")
    e.lines.append(f"    buffer_store_dword v30, off, {srd(SWS)}, {sPT} sc1")
    e("s_mov_b64 exec, -1")
    e.label(l)


def flagcalc(hi, sh, lo, base):
    return f"s_lshl_b32 {sPT}, {hi}, {sh}\ns_add_u32 {sPT}, {sPT}, {lo}\ns_lshl_b32 {sPT}, {sPT}, 7\ns_add_u32 {sPT}, {sPT}, {base}"


XR, FR, HT, XP, HP, HO = 32, 40, 56, 72, 80, 88
vXG = "v24"
e("s_cmp_ge_u32 s2, 256\ns_cbranch_scc1 L_end")
e(f"s_load_dwordx2 s[{SX}:{SX+1}], s[0:1], 0\ns_load_dwordx16 s[76:91], s[0:1], 0\ns_load_dwordx4 s[92:95], s[0:1], 64")
e(f"s_load_dwordx2 s[{SWS}:{SWS+1}], s[0:1], 80")
e(f"s_lshr_b32 {sJ}, s2, 3")
e("s_getpc_b64 s[98:99]")
e.label("L_pc")
e(f"s_lshl_b32 {sT0}, {sJ}, 10\nv_lshrrev_b32 v25, 5, v0\nv_lshl_add_u32 v26, v25, 7, {sT0}")
e(f"v_min_u32 v26, L_codeend-L_pc-4, v26")
e("v_mov_b32 v29, s99\nv_add_co_u32 v28, vcc, s98, v26\nv_addc_co_u32 v29, vcc, 0, v29, vcc")
e("global_load_dword v108, v[28:29], off")
if OPT["stamps"]:
    e("v_mov_b32 v31, 0")
e(f"v_and_b32 v26, 31, v0\nv_mul_u32_u24 {vXG}, 896, v25\nv_lshl_add_u32 {vXG}, v26, 4, {vXG}\ns_mul_i32 {sT0}, s2, 7168")
e(f"v_add_u32 {vXG}, {sT0}, {vXG}\nv_cmp_gt_u32 vcc, 28, v26\nv_mov_b32 v27, {OOB}")
e(f"s_mov_b32 s{SX+2}, 1835008\ns_mov_b32 s{SX+3}, 0x20000")
e(f"v_cndmask_b32 {vXG}, v27, {vXG}, vcc\nv_lshrrev_b32 v27, 6, v0\nv_and_b32 {vLANE}, 63, v0")
e.smem_wait()
x0 = e(f"buffer_load_dwordx4 {vr(XR,4)}, {vXG}, {srd(SX)}, 0 offen")
x1 = e(f"buffer_load_dwordx4 {vr(XR+4,4)}, {vXG}, {srd(SX)}, 0 offen offset:448")
e(f"v_readfirstlane_b32 {sWV}, v27\ns_and_b32 {sXCD}, s2, 7")
stamp(0)
for b, src, n in ((SW, 78, 448 * 2688), (SDBG, 94, 256), (SW1, 84, 2048 * 3584), (SWS, None, WS_BYTES), (SW2, 88, 1792 * 4096),
                  (SWO, 80, 448 * 896), (SOUT, 92, 1835008), (SB1, 86, 3584), (SB2, 90, 4096)):
    if src is not None:
        e(f"s_mov_b64 s[{b}:{b+1}], s[{src}:{src+1}]")
    e(f"s_mov_b32 s{b+2}, {n}\ns_mov_b32 s{b+3}, s{SX+3}")
    if b == SDBG:
        e(f"s_or_b32 {sT0}, s2, {sWV}\ns_cbranch_scc1 L_nononce")
        e("s_memrealtime s[98:99]")
        e.smem_wait()
        e("s_or_b32 s98, s98, 1\nv_mov_b32 v28, s98\ns_mov_b64 exec, 1")
        e.lines.append(f"    buffer_store_dword v28, off, {srd(SDBG)}, 0 sc1")
        e("s_mov_b64 exec, -1")
        e.label("L_nononce")
    if b == SW and OPT["wt"]:
        e(f"""s_lshr_b32 {sT0}, {sXCD}, 1
s_add_u32 {sT1}, {sT0}, 1
s_bfe_u32 {sT1}, {sT1}, 0x10001
s_add_u32 {sT1}, {sT1}, 1
s_mul_i32 {sT0}, {sT0}, 224
s_andn2_b32 {sT0}, {sT0}, 127
s_mul_i32 {sT2}, {sJ}, {16*2688}
s_add_u32 {sT0}, {sT0}, {sT2}
v_and_b32 v27, 3, v0
v_min_u32 v27, {sT1}, v27
v_bfe_u32 v28, v0, 2, 2
v_min_u32 v28, 2, v28
v_mul_u32_u24 v28, 7, v28
v_add_u32 v27, v27, v28
v_lshrrev_b32 v28, 4, v0
v_mul_u32_u24 v28, 21, v28
v_add_lshl_u32 v27, v27, v28, 7
buffer_load_dword v108, v27, {srd(SW)}, {sT0} offen""")
e(f"s_lshl_b32 {sW4K}, {sWV}, 12\nv_lshlrev_b32 {vL16}, 4, {vLANE}")
vG, vR, vC, vS_, vHI = "v208", "v209", "v210", "v211", "v212"
e(f"s_and_b32 {sT0}, s2, 1\ns_add_u32 {sT0}, {sT0}, {sJ}\ns_cmp_ge_u32 {sT0}, 25\ns_cbranch_scc1 L_role_a")
VM0 = (e.vm, e.vm_done)


def lane_fields(G, R, C, S_, HI):
    return (f"v_lshrrev_b32 {G}, 4, {vLANE}\nv_bfe_u32 {R}, {vLANE}, 2, 2\nv_and_b32 {C}, 3, {vLANE}\n"
            f"v_and_b32 {S_}, 15, {vLANE}\nv_lshrrev_b32 {HI}, 5, {vLANE}\n")


def rstd(dst, var):
    if OPT["mimic"]:
        return (f"v_cvt_pk_bf16_f32 {dst}, 0, {var}\nv_add_f32 {dst}, {f32(1e-5)}, {dst}\n"
                f"v_cvt_pk_bf16_f32 {dst}, 0, {dst}\nv_sqrt_f32 {dst}, {dst}\n"
                f"v_cvt_pk_bf16_f32 {dst}, 0, {dst}\nv_rcp_f32 {dst}, {dst}\n")
    return f"v_add_f32 {dst}, {f32(1e-5)}, {var}\nv_rsq_f32 {dst}, {dst}\n"


def layernorm(sc, lds, first_ops, G, R, C, S_, lD, own_pub=True):
    S = {}
    vLW, vLR, vHA = "v109", "v110", "v111"
    sc.txt(f"""v_mul_u32_u24 {vLW}, 960, v25
v_lshl_add_u32 {vLW}, v26, 4, {vLW}
v_mul_u32_u24 {vLR}, 960, {R}
v_lshl_add_u32 {vLR}, {G}, 5, {vLR}
v_lshl_add_u32 {vLR}, {C}, 3, {vLR}
s_lshl_b32 {sT0}, {sWV}, 7
v_add_u32 {vLR}, {sT0}, {vLR}
v_mul_u32_u24 {vHA}, {HS}, {G}
v_lshl_add_u32 {vHA}, {S_}, 4, {vHA}
s_mul_i32 {sH0}, {sWV}, {4*HS}
s_lshl_b32 {sT0}, s2, 8
s_add_u32 {sH0}, {sH0}, {sT0}
s_add_u32 {sH1}, {sH0}, {16*HS}
s_cmp_eq_u32 {sWV}, 3
s_cselect_b32 {sH1}, {OOB}, {sH1}
s_mov_b32 {sONES}, 0x3f803f80
s_mov_b32 {sMSK}, 0xffff0000
s_mov_b32 {sAB}, {XF}
v_mov_b32 v96, 0
v_mov_b32 v97, 0""", atomic=True, issued=first_ops, pace=10**8)
    vS, vQ = "v96", "v97"
    def p1():
        for i, xs in enumerate((x0, x1)):
            e.wait_vm(xs)
            for k in range(4):
                d = 4 * i + k
                e(f"v_dot2c_f32_bf16 {vS}, {sONES}, v{XR+d}\nv_dot2c_f32_bf16 {vQ}, v{XR+d}, v{XR+d}")
                e(f"v_lshlrev_b32 v{FR+2*d}, 16, v{XR+d}\nv_and_b32 v{FR+2*d+1}, {sMSK}, v{XR+d}")
        stamp(1)
        S["non"] = e(nonce_txt("v29"))
    sc.fn(p1, cost=128)
    t = ""
    for m in ("quad_perm:[1,0,3,2]", "quad_perm:[2,3,0,1]", "row_half_mirror", "row_mirror"):
        t += f"v_add_f32_dpp {vS}, {vS}, {vS} {m} row_mask:0xf bank_mask:0xf\n"
        t += f"v_add_f32_dpp {vQ}, {vQ}, {vQ} {m} row_mask:0xf bank_mask:0xf\n"
    t += f"v_mov_b32 v98, {vS}\nv_mov_b32 v99, {vQ}\nv_permlane16_swap_b32 {vS}, v98\nv_permlane16_swap_b32 {vQ}, v99\n"
    t += f"v_add_f32 {vS}, {vS}, v98\nv_add_f32 {vQ}, {vQ}, v99\n"
    vM, vV, vR1, vB1, vR2, vB2 = "v98", "v99", "v100", "v102", "v104", "v106"
    t += f"v_mul_f32 {vM}, {f32(1/448)}, {vS}\nv_mul_f32 {vV}, {f32(1/448)}, {vQ}\n"
    t += f"v_fma_f32 {vV}, -{vM}, {vM}, {vV}\nv_max_f32 {vV}, 0, {vV}\n"
    t += rstd(vR1, vV)
    t += f"v_mul_f32 {vV}, {vV}, {vR1}\nv_mul_f32 {vB1}, {vM}, {vR1}\nv_mul_f32 {vV}, {vV}, {vR1}\n"
    t += rstd(vR2, vV)
    t += f"v_mul_f32 {vR2}, {vR2}, {vR1}\nv_mul_f32 {vB2}, {vM}, {vR2}\n"
    mods = "op_sel_hi:[1,0,0] neg_lo:[0,0,1] neg_hi:[0,0,1]"
    for d in range(8):
        t += f"v_pk_fma_f32 {vr(HT+2*d,2)}, {vr(FR+2*d,2)}, v[104:105], v[106:107] {mods}\n"
    for d in range(8):
        t += f"v_cvt_pk_bf16_f32 v{HP+d}, v{HT+2*d}, v{HT+2*d+1}\n"
    t += f"ds_write_b128 {vLW}, {vr(HP,4)} offset:{lds}\nds_write_b128 {vLW}, {vr(HP+4,4)} offset:{lds+448}\n"
    for d in range(8):
        t += f"v_pk_fma_f32 {vr(FR+2*d,2)}, {vr(FR+2*d,2)}, v[100:101], v[102:103] {mods}\n"
    for d in range(8):
        t += f"v_cvt_pk_bf16_f32 v{XP+d}, v{FR+2*d}, v{FR+2*d+1}\n"
    sc.txt(t)
    def tr():
        e.wait_lg(e.lg - 1)
        e("s_barrier")
        r = {}
        for b in range(2):
            for rd in range(2):
                r[b] = e(f"ds_read_b64_tr_b16 {vr(HO+4*b+2*rd,2)}, {vLR} offset:{lds+rd*4*960+b*512}")
        for i in range(2):
            e(f"buffer_store_dwordx4 {vr(XP+4*i,4)}, {vXG}, {srd(SWS)}, {sAB} offen offset:{448*i} sc1")
        for b in range(2):
            e.wait_lg(r[b])
            S["st"] = e(f"buffer_store_dwordx4 {vr(HO+4*b,4)}, {vHA}, {srd(SWS)}, {[sH0, sH1][b]} offen sc1")
        stamp(2)
    sc.fn(tr, cost=0, pace=OPT["pace"])
    def pub():
        e.wait_vm(S["st"])
        nonce_check("v29")
        e("s_barrier")
        publish(f"s_lshl_b32 {sPT}, s2, {FS}\ns_add_u32 {sPT}, {sPT}, {FLL}")
        stamp(3)
        if own_pub and OPT["xa"] & 4:
            stamp(6), stamp(9), stamp_flush()
            e("s_endpgm")
    return sc.fn(pub, cost=16, pre=lD)


B = Sched()
ops, items, bg = B.ops, B.items, B.bg
vTN = [["v2", "v3"], ["v4", "v5"]]
vTP = [["v6", "v7"], ["v8", "v9"]]
vD1, vD2, vDO, vDS, vTS = ["v10", "v11"], ["v12", "v12"], ["v13", "v14"], "v15", "v16"
vROW, vCOL = "v213", "v214"
ACC, STG, NSTG, RB = 32, 112, 12, 160
RING = [3, 4, 5, 6, 7, 8, 9]
GSH = {1: 4, 2: 3, 4: 2, 8: 1}[OPT["G"]]
it_set = B.txt(lane_fields(vG, vR, vC, vS_, vHI) + f"""s_lshr_b32 {sT0}, {sXCD}, 1
s_mul_i32 {sT0}, {sT0}, 49
s_and_b32 {sT1}, {sXCD}, 1
s_mul_i32 {sT1}, {sT1}, 25
s_add_u32 {sT0}, {sT0}, {sT1}
s_add_u32 {sT0}, {sT0}, {sJ}
s_mul_i32 {sFT}, {sT0}, 9363
s_lshr_b32 {sFT}, {sFT}, 16
s_mul_i32 {sT1}, {sFT}, 7
s_sub_u32 {sDT}, {sT0}, {sT1}
s_and_b32 {sROT}, {sDT}, {OPT["G"]-1}
s_lshl_b32 {sROT}, {sROT}, {GSH}
v_lshl_add_u32 {vROW}, {vHI}, 2, {vR}
v_and_b32 v215, 1, {vG}
v_lshlrev_b32 {vCOL}, 4, {vC}
v_lshl_add_u32 {vCOL}, v215, 6, {vCOL}
s_mul_i32 {sT0}, {sWV}, {512*3584}
s_lshl_b32 {sT1}, {sFT}, 7
s_add_u32 {sT0}, {sT0}, {sT1}
v_mul_u32_u24 {vD1[0]}, 3584, {vROW}
v_add3_u32 {vD1[0]}, {vD1[0]}, {vCOL}, {sT0}
v_xor_b32 {vD1[1]}, 32, {vD1[0]}""", atomic=True)

ring_n = [0]
ring_last = {}


def dma_unit(vd, sr, so_txt, pstep, after):
    unit = RING[ring_n[0] % len(RING)]
    ring_n[0] += 1
    prev = [ring_last[unit]] if unit in ring_last else []
    r = []
    for p in range(4):
        def f(p=p):
            if p == 0:
                for x in prev:
                    e.wait_lg(x.lgseq)
                e(f"s_add_u32 m0, {sW4K}, {unit*16384}")
                e(so_txt)
            else:
                e(f"s_add_u32 {sSO}, {sSO}, {pstep-1024}")
            return e(f"buffer_load_dwordx4 {vd[p%2]}, {srd(sr)}, {sSO} offen offset:{1024*p} lds")
        r.append(Op(f, (list(after) + prev) if p == 0 else []))
    return unit, r


def read_items(bases, step, unit, dst, needs, after=()):
    its = []
    seg, off = (unit - 3) // 4, ((unit - 3) % 4) * 16384
    for t32 in range(2):
        it = Item(None, needs, cost=16, after=after)
        def f(it=it, t32=t32):
            for hf in range(2):
                for rd in range(2):
                    it.lgseq = e(f"ds_read_b64_tr_b16 {dst(2*t32+hf, rd)}, {bases[seg][hf]} offset:{off+t32*256+rd*step}")
        it.fn = f
        bg.append(it)
        its.append(it)
    ring_last[unit] = its[-1]
    return its[-1]


it_trset = Item(None, cost=60)
w1ops, w1rd = {}, {}
for i in range(16):
    ii = i % 3 if OPT["ab"] & 1 else i
    unit, o = dma_unit(vD1, SW1, f"s_xor_b32 {sSO}, {sROT}, {ii}\ns_mul_i32 {sSO}, {sSO}, {32*3584}", 8 * 3584, [it_set])
    w1ops[i] = o
    w1rd[i] = read_items(vTN, 512, unit, lambda t, rd, i=i: ar(16 * i + 4 * t + 2 * rd, 2), o, after=[it_trset])
w1all = [o for i in range(16) for o in w1ops[i]]
if OPT["bt"]:
    it_bt = B.txt(f"""v_lshrrev_b32 v217, 2, {vLANE}
s_mul_i32 {sT0}, {sJ}, 11
v_add_u32 v218, {sT0}, v217
v_cmp_gt_u32 vcc, 11, v217
v_min_u32 v218, 255, v218
v_mul_u32_u24 v218, 3584, v218
v_lshl_add_u32 v218, {vC}, 7, v218
v_mov_b32 v217, {OOB}
v_cndmask_b32 v218, v217, v218, vcc
s_mul_i32 {sT0}, {sWV}, {512*3584}
s_mul_i32 {sT1}, {sXCD}, 7
s_lshr_b32 {sT1}, {sT1}, 1
s_lshl_b32 {sT1}, {sT1}, 7
s_add_u32 {sT2}, {sT0}, {sT1}
s_add_u32 {sT3}, {sT2}, {256*3584}""", atomic=True)
    w1all = [Op(lambda r=r: e(f"buffer_load_dword v108, v218, {srd(SW1)}, {r} offen"), [it_bt]) for r in (sT2, sT3)] + w1all
it_lpub = layernorm(B, 0, w1all[:OPT["n1"]], vG, vR, vC, vS_, OPT["lD"])
it_trset.fn = lambda: e(f"""v_lshlrev_b32 v216, 6, {vR}
v_lshl_add_u32 v216, {vC}, 3, v216
v_lshl_add_u32 v216, v215, 5, v216
s_add_u32 {sT0}, {sW4K}, 49152
v_lshl_add_u32 {vTN[0][0]}, {vG}, 10, v216
v_add_u32 {vTN[0][0]}, {sT0}, {vTN[0][0]}
v_xor_b32 {vTN[0][1]}, 32, {vTN[0][0]}
v_add_u32 {vTN[1][0]}, 65536, {vTN[0][0]}
v_add_u32 {vTN[1][1]}, 65536, {vTN[0][1]}
v_lshl_add_u32 {vTP[0][0]}, {vG}, 9, v216
v_add_u32 {vTP[0][0]}, {sT0}, {vTP[0][0]}
v_xor_b32 {vTP[0][1]}, 32, {vTP[0][0]}
v_add_u32 {vTP[1][0]}, 65536, {vTP[0][0]}
v_add_u32 {vTP[1][1]}, 65536, {vTP[0][1]}""")
items.insert(2 + OPT['bt'], it_trset)

vPL, vPLA, vBA1, BIAS, RED = "v17", "v18", "v19", 224, 232
vPU, vPUA, vPO, vPOA, vOA, vBA2 = "v17", "v20", "v19", "v21", "v22", "v25"
vOS, vBS = "v26", "v27"
WA, WS_, RA, RS_ = 238, 242, 244, 252
sUBS, sUBM, sSOo, sOUTO, sOUTO2, sOUTS, sB2O, sWOS = "s68", "s69", "s70", "s71", "s72", "s73", "s74", "s75"
C0 = -2.0 * math.sqrt(2.0 / math.pi) * math.log2(math.e)
C1 = C0 * 0.044715
it_p2set = B.txt(f"""s_lshl_b32 {sT0}, {sWV}, {6+FS}
s_add_u32 {sT0}, {sT0}, {FLL}
v_lshl_add_u32 {vPLA}, {vLANE}, {FS}, {sT0}
s_lshl_b32 {sT0}, {sFT}, 7
v_lshl_add_u32 {vBA1}, {vG}, 3, {sT0}
s_lshl2_add_u32 {sUST}, {sDT}, {sWV}
s_mul_i32 {sUST}, {sUST}, {US}
s_lshl_b32 {sT0}, {sFT}, 11
s_add_u32 {sUST}, {sUST}, {sT0}
s_add_u32 {sUST}, {sUST}, {UF}
v_add_u32 v{RED}, {sW4K}, {vL16}
v_xor_b32 v{RED+1}, 4096, v{RED}
v_xor_b32 v{RED+2}, 8192, v{RED}
v_xor_b32 v{RED+3}, 12288, v{RED}
v_mov_b32 v236, {f32(C1)}
v_mov_b32 v237, {f32(C0)}""")
B.txt(f"""s_mul_i32 {sT0}, {sJ}, 43
s_lshr_b32 {sT0}, {sT0}, 8
s_mul_i32 {sT1}, {sT0}, 6
s_sub_u32 {sK3}, {sJ}, {sT1}
s_lshl2_add_u32 {sS3}, {sXCD}, {sT0}
s_mul_i32 {sT0}, {sWV}, {448*4096}
s_lshl_b32 {sB2O}, {sS3}, 7
s_add_u32 {sT0}, {sT0}, {sB2O}
v_lshlrev_b32 v217, 5, {vHI}
v_xor_b32 v217, v217, {vCOL}
v_lshlrev_b32 {vD2[0]}, 12, {vROW}
v_add3_u32 {vD2[0]}, {vD2[0]}, v217, {sT0}
s_mul_i32 {sT0}, {sWV}, {112*896}
s_lshl_b32 {sT1}, {sK3}, 7
s_add_u32 {sT2}, {sT0}, {sT1}
s_lshl_b32 {sT3}, {sWV}, 5
v_xor_b32 v217, {sT3}, {vCOL}
v_mul_u32_u24 {vDO[0]}, 896, {vROW}
v_add3_u32 {vDO[0]}, {vDO[0]}, v217, {sT2}
v_xor_b32 {vDO[1]}, 32, {vDO[0]}
s_mul_i32 {sOUTS}, {sS3}, 57344
s_add_u32 {sOUTO}, {sOUTS}, {sT1}
s_add_u32 {sOUTO2}, {sOUTO}, {32*896}
v_lshrrev_b32 v217, 1, {vLANE}
v_mul_u32_u24 {vDS}, 896, v217
v_and_b32 v217, 1, {vLANE}
v_lshl_add_u32 {vDS}, v217, 4, {vDS}
v_add_u32 {vDS}, {sT0}, {vDS}
s_lshl_b32 {sT1}, {sK3}, 5
s_add_u32 {sT1}, {sT1}, 768
s_add_u32 {sUBS}, {sK3}, 24
s_mul_i32 {sUBS}, {sUBS}, {US}
s_mul_i32 {sUBM}, {sWV}, 14336
s_add_u32 {sUBM}, {sUBM}, {UF}
s_add_u32 {sUBS}, {sUBS}, {sUBM}
s_add_u32 {sOUTS}, {sOUTS}, {sT1}""")
sP = [f"s{76+m}" for m in range(7)]
t = f"s_cmp_ge_u32 {sK3}, 3\ns_addc_u32 {sT0}, {sK3}, 0\ns_lshl_b32 {sP[0]}, {sT0}, 11\n" if OPT["rot2"] else f"s_mov_b32 {sP[0]}, 0\n"
for m in range(1, 7):
    t += f"s_add_u32 {sP[m]}, {sP[m-1]}, 2048\ns_cmp_eq_u32 {sP[m]}, 14336\ns_cselect_b32 {sP[m]}, 0, {sP[m]}\n"
B.txt(t, atomic=True)
B.txt(f"""s_cmp_lt_u32 {sK3}, 4
s_cselect_b32 {sWOS}, {sT1}, {OOB}
s_cselect_b32 {sUBS}, {sUBS}, {OOB}
s_cselect_b32 {sOUTS}, {sOUTS}, {OOB}""", atomic=True)
t = f"""v_lshl_add_u32 v217, {vG}, 3, {vR}
v_lshlrev_b32 {vTS}, 5, v217
v_lshl_add_u32 {vTS}, {vC}, 3, {vTS}
v_add_u32 {vTS}, {sW4K}, {vTS}
v_and_b32 v217, 7, {vLANE}
v_min_u32 v218, 6, v217
v_bfe_u32 v219, {vLANE}, 3, 1
s_sub_u32 {sT0}, 6, {sK3}
v_mul_u32_u24 v219, {sT0}, v219
v_add_u32 v219, {sK3}, v219
v_lshl_add_u32 v218, v219, 5, v218
s_mul_i32 {sT0}, {sWV}, {7*128}
s_add_u32 {sT0}, {sT0}, {FLU}
v_lshl_add_u32 {vPUA}, v218, 7, {sT0}
s_lshl_b32 {sT0}, {sS3}, 2
v_and_b32 v218, 3, {vLANE}
v_add_u32 v218, {sT0}, v218
v_mul_u32_u24 v218, 57, v218
v_lshrrev_b32 v218, 9, v218
s_lshl_b32 {sT0}, {sWV}, 11
s_add_u32 {sT0}, {sT0}, {FLO}
v_lshl_add_u32 {vPOA}, v218, 7, {sT0}
s_lshl_b32 {sSOo}, {sS3}, 16
s_add_u32 {sSOo}, {sSOo}, {sW4K}
s_add_u32 {sSOo}, {sSOo}, {OF}
v_lshrrev_b32 v218, 3, v0
v_mul_u32_u24 {vOA}, 896, v218
v_lshl_add_u32 {vOA}, v217, 4, {vOA}
v_lshlrev_b32 {vBA2}, 1, v218
v_lshrrev_b32 v219, 4, v218
v_lshlrev_b32 v{RA}, 14, v219
v_lshrrev_b32 v219, 1, v217
v_lshl_add_u32 v{RA}, v219, 12, v{RA}
v_and_b32 v219, 15, v218
v_lshl_add_u32 v{RA}, v219, 8, v{RA}
v_bfe_u32 v219, v218, 1, 1
v_lshl_add_u32 v{RA}, v219, 7, v{RA}
v_and_b32 v219, 7, v218
v_xor_b32 v219, v219, v217
v_lshl_add_u32 v{RA}, v219, 4, v{RA}
"""
for q in range(4):
    for rd in range(2):
        if q or rd:
            t += f"v_xor_b32 v{RA+2*q+rd}, {q*4096+rd*128}, v{RA}\n"
t += f"""v_lshrrev_b32 v218, 2, v0
v_mul_u32_u24 {vOS}, 896, v218
v_lshl_add_u32 {vOS}, {vC}, 3, {vOS}
v_lshlrev_b32 {vBS}, 1, v218
v_bfe_u32 v219, v218, 1, 2
v_xor_b32 v219, v219, {vC}
v_lshlrev_b32 v{RS_}, 6, v218
v_lshl_add_u32 v{RS_}, v219, 4, v{RS_}
v_add_u32 v{RS_}, 65536, v{RS_}
v_bfe_u32 v219, {vLANE}, 1, 2
v_xor_b32 v219, v219, {vG}
v_lshlrev_b32 v{WS_}, 6, {vS_}
v_lshl_add_u32 v{WS_}, v219, 4, v{WS_}
s_add_u32 {sT0}, {sW4K}, 65536
v_add_u32 v{WS_}, {sT0}, v{WS_}
v_xor_b32 v218, v217, {vHI}
v_lshlrev_b32 v{WA}, 4, v218
v_xor_b32 v{WA}, {sT3}, v{WA}
v_bfe_u32 v219, {vLANE}, 1, 1
v_xor_b32 v219, v219, v215
v_lshl_add_u32 v{WA}, v219, 7, v{WA}
v_lshl_add_u32 v{WA}, {vS_}, 8, v{WA}
v_add_u32 v{WA}, {sW4K}, v{WA}
"""
for q in range(1, 4):
    t += f"v_xor_b32 v{WA+q}, {32*q}, v{WA}\n"
it_p3set = B.txt(t)

bias_ops = [Op(lambda j=j: e(f"buffer_load_dwordx2 {vr(BIAS+2*j,2)}, {vBA1}, {srd(SB1)}, 0 offen offset:{32*j}"), [it_p2set], cost=16) for j in range(4)]
pollL = Op(lambda: e(poll_txt(vPL, vPLA)), [it_p2set], cost=32)
NB = 20
ops += w1all[:NB] + bias_ops + w1all[NB:-OPT["php"]] + [pollL] + w1all[-OPT["php"]:]
t = ""
for j in range(4):
    for k in range(2):
        t += f"v_lshlrev_b32 v{ACC+4*j+2*k}, 16, v{BIAS+2*j+k}\nv_and_b32 v{ACC+4*j+2*k+1}, {sMSK}, v{BIAS+2*j+k}\n"
B.txt(t, needs=bias_ops)
it_pollL = B.fn(lambda: (poll_check(vPL, vPLA), stamp(12)), needs=[pollL], cost=16)
stg_n = [0]
stg_last = {}
S = {}


def act_load(pre_txt, so, off, after):
    slot = stg_n[0] % NSTG
    stg_n[0] += 1
    def f():
        if pre_txt:
            e(pre_txt)
        return e(f"buffer_load_dwordx4 {vr(STG+4*slot,4)}, {vL16}, {srd(SWS)}, {so} offen offset:{off} sc1")
    prev = [stg_last[slot]] if slot in stg_last else []
    o = Op(f, list(after) + prev)
    ops.append(o)
    return slot, o


def mfma_item(lst, needs, rds, slot, extra=()):
    def f():
        for rd in rds:
            e.wait_lg(rd.lgseq)
        ex = list(extra)
        per = -(-len(ex) // len(lst))
        for acc, A, Bm, zero in lst:
            e(f"v_mfma_f32_16x16x32_bf16 {vr(acc,4)}, {A}, {Bm}, {'0' if zero else vr(acc,4)}")
            for _ in range(per):
                if ex:
                    ex.pop(0)()
    it = Item(f, needs, cost=16 * len(lst), after=list(rds), strict=True)
    stg_last[slot] = it
    items.append(it)
    return it


def spread(tasks, n, first):
    out = {i: [] for i in range(n)}
    per = -(-len(tasks) // (n - first)) if tasks else 0
    tasks = list(tasks)
    for i in range(first, n):
        out[i] = tasks[:per]
        tasks = tasks[per:]
    return out


def L(text):
    return lambda: e(text)


def a2(q, mt): return ACC + 16 * q + 4 * mt
p2last = {}
for q in (3, 2, 1, 0):
    ex = {i: [] for i in range(16)}
    if q < 3:
        for mt in range(4):
            ex[1 + mt].append(lambda q=q, mt=mt: S.__setitem__("rw", e(f"ds_write_b128 v{RED}, {vr(a2(q+1,mt),4)} offset:{q*16384+mt*1024}")))
    if q == 0:
        ex[7].append(lambda: (e.wait_lg(S["rw"]), e("s_barrier")))
        rd_, ad_ = [], []
        for mt in range(4):
            for p in range(1, 4):
                rd_.append(lambda mt=mt, p=p: S.__setitem__(("r", mt), e(f"ds_read_b128 {vr(RB+16*(p-1)+4*mt,4)}, v{RED+p} offset:{(p-1)*16384+mt*1024}")))
            ad_.append(lambda mt=mt: e.wait_lg(S["r", mt]))
            for k in range(4):
                ad_.append(L(f"v_add_f32 v{RB+4*mt+k}, v{RB+4*mt+k}, v{RB+16+4*mt+k}"))
            for k in range(4):
                ad_.append(L(f"v_add_f32 v{RB+4*mt+k}, v{RB+4*mt+k}, v{RB+32+4*mt+k}"))
        for i, l in spread(rd_, 11, 8).items(): ex[i] += l
        for i, l in spread(ad_, 16, 11).items(): ex[i] += l
    for i in range(16):
        ii = i % 6 if OPT["ab"] & 2 else i
        pre = ""
        if i == 0:
            pre += (f"s_xor_b32 {sAB}, {sWV}, {0 if OPT['ab'] & 2 else q}\ns_lshl2_add_u32 {sAB}, {sDT}, {sAB}\ns_mul_i32 {sAB}, {sAB}, {HS}\n"
                    f"s_lshl2_add_u32 {sAB}, {sW4K}, {sAB}\n")
        if i % 2 == 0:
            pre += f"s_xor_b32 {sSA}, {sROT}, {ii}\ns_lshl_b32 {sSA}, {sSA}, 10\ns_add_u32 {sSA}, {sSA}, {sAB}"
        slot, o = act_load(pre, sSA, 1024 * (i % 2), [it_pollL])
        p2last[i] = mfma_item([(a2(q, mt), ar(16 * i + 4 * mt, 4), vr(STG + 4 * slot, 4), i == 0 and q != 0) for mt in range(4)],
                              [o], [w1rd[i]], slot, ex[i])
    if q in (2, 0):
        B.fn(lambda q=q: stamp(13 if q else 6), cost=0, strict=True, pace=OPT["pace3"] if q == 0 else None)

XRES, BRES, XRS = 213, 221, 208
XRES, BRES, XRS, BRS = 216, 224, 226, 228
res_ops = [Op(lambda: e(f"buffer_load_dwordx4 {vr(XRES,4)}, {vOA}, {srd(SX)}, {sOUTO} offen"), [it_p3set, it_pollL]),
           Op(lambda: e(f"buffer_load_dwordx4 {vr(XRES+4,4)}, {vOA}, {srd(SX)}, {sOUTO2} offen")),
           Op(lambda: e(f"buffer_load_dwordx2 {vr(XRS,2)}, {vOS}, {srd(SX)}, {sOUTS} offen")),
           Op(lambda: e(f"buffer_load_ushort v{BRES}, {vBA2}, {srd(SB2)}, {sB2O} offen"), cost=16),
           Op(lambda: e(f"buffer_load_ushort v{BRES+1}, {vBA2}, {srd(SB2)}, {sB2O} offen offset:64"), cost=16),
           Op(lambda: e(f"buffer_load_ushort v{BRS}, {vBS}, {srd(SB2)}, {sB2O} offen"), cost=16)]
ops += res_ops
w2rd, word = {}, {}
for i in range(14):
    ii = i % 3 if OPT["ab"] & 4 else i
    unit, o = dma_unit(vD2, SW2, f"s_lshl_b32 {sSO}, {sP[ii//2]}, 7" + (f"\ns_add_u32 {sSO}, {sSO}, 131072" if ii % 2 else ""), 8 * 4096, [])
    w2rd[i] = read_items(vTP, 2048, unit, lambda t, rd, i=i: ar(16 * i + 4 * t + 2 * rd, 2), o, after=[p2last[i]])
    ops += o
p3w = []
SF = 192
unit_s, o = dma_unit([vDS, vDS], SWO, f"s_mov_b32 {sSO}, {sWOS}", 28 * 896, [])
p3w += o
it_up = Item(None, cost=16, pre=OPT["pre"])
strip_rd = Item(None, o, cost=32, after=[it_up])
def f():
    e(f"v_add_u32 {vTS}, {unit_s*16384}, {vTS}")
    for hd in range(4):
        for rd in range(2):
            strip_rd.lgseq = e(f"ds_read_b64_tr_b16 {vr(SF+4*hd+2*rd,2)}, {vTS} offset:{hd*1024+rd*128}")
strip_rd.fn = f
bg.append(strip_rd)
for hd in range(4):
    unit, o = dma_unit(vDO, SWO, f"s_mov_b32 {sSO}, {28*hd*896}", 8 * 896, [])
    n0 = len(bg)
    word[hd] = read_items(vTN, 512, unit, lambda t, rd, hd=hd: ar(224 + 16 * (hd % 2) + 4 * t + 2 * rd, 2), o, after=[p2last[15]])
    word[hd].first = bg[n0]
    p3w += o

G_ = 48
for hf in range(2):
    t = ""
    a = ACC + 8 * hf
    R8, H4 = range(8), range(4)
    for i in H4: t += f"v_pk_add_f32 {vr(a+2*i,2)}, {vr(a+2*i,2)}, {vr(RB+8*hf+2*i,2)}\n"
    for i in H4: t += f"v_pk_mul_f32 {vr(G_+2*i,2)}, {vr(a+2*i,2)}, {vr(a+2*i,2)}\n"
    for i in H4: t += f"v_pk_fma_f32 {vr(G_+2*i,2)}, {vr(G_+2*i,2)}, v[236:237], v[236:237] op_sel:[0,0,1] op_sel_hi:[1,0,1]\n"
    for i in H4: t += f"v_pk_mul_f32 {vr(G_+2*i,2)}, {vr(G_+2*i,2)}, {vr(a+2*i,2)}\n"
    for i in R8: t += f"v_exp_f32 v{G_+i}, v{G_+i}\n"
    for i in H4: t += f"v_pk_add_f32 {vr(G_+2*i,2)}, {vr(G_+2*i,2)}, 1.0 op_sel_hi:[1,0]\n"
    for i in R8: t += f"v_rcp_f32 v{G_+i}, v{G_+i}\n"
    for i in H4: t += f"v_pk_mul_f32 {vr(G_+2*i,2)}, {vr(G_+2*i,2)}, {vr(a+2*i,2)}\n"
    for i in H4: t += f"v_cvt_pk_bf16_f32 v{G_+8+4*hf+i}, v{G_+2*i}, v{G_+2*i+1}\n"
    B.txt(t)
    B.fn(lambda hf=hf: S.__setitem__("ust", e(f"buffer_store_dwordx4 {vr(G_+8+4*hf,4)}, {vL16}, {srd(SWS)}, {sUST} offen offset:{1024*hf} sc1")), cost=0, strict=True)
B.fn(lambda: stamp(14), cost=0, pace=OPT["pace"])
def u_publish():
    e.wait_vm(S["ust"])
    e("s_barrier")
    publish(flagcalc(sDT, 5, sFT, FLU))
    stamp(7)
    e(f"s_cmp_ge_u32 {sJ}, 24\ns_cbranch_scc1 L_end")
it_up.fn = u_publish
items.append(it_up)

pollU = Op(lambda: e(poll_txt(vPU, vPUA)), [it_up], cost=16)
pollO = Op(lambda: e(poll_txt(vPO, vPOA)), cost=8)
ops += p3w[:20 - OPT["pup"]] + [pollU] + p3w[20 - OPT["pup"]:]
RES, RSS = 176, 232
t = ""
for it_ in range(2):
    t += f"v_lshlrev_b32 v{BRES+it_}, 16, v{BRES+it_}\n"
    for k in range(4):
        t += f"v_lshlrev_b32 v{RES+8*it_+2*k}, 16, v{XRES+4*it_+k}\nv_and_b32 v{RES+8*it_+2*k+1}, {sMSK}, v{XRES+4*it_+k}\n"
    for k in range(8):
        t += f"v_add_f32 v{RES+8*it_+k}, v{RES+8*it_+k}, v{BRES+it_}\n"
t += f"v_lshlrev_b32 v{BRS}, 16, v{BRS}\n"
for k in range(2):
    t += f"v_lshlrev_b32 v{RSS+2*k}, 16, v{XRS+k}\nv_and_b32 v{RSS+2*k+1}, {sMSK}, v{XRS+k}\n"
for k in range(4):
    t += f"v_add_f32 v{RSS+k}, v{RSS+k}, v{BRS}\n"
B.txt(t, needs=res_ops)
it_pollU = B.fn(lambda: (stamp(15), poll_check(vPU, vPUA), stamp(16)), needs=[pollU], cost=16)


def a3(q, nt): return ACC + 16 * q + 4 * nt
POL = ["", " sc1", " nt"][OPT["outpol"]]
PO = {}


def wr_main(q, nt):
    return lambda: S.__setitem__("ow", e(f"ds_write_b128 v{WA+q}, {vr(a3(q,nt),4)} offset:{nt*16384}"))


def u_pass(q, ex, zero):
    for i in range(14):
        ii = i % 6 if OPT["ab"] & 16 else i
        pre = ""
        if i == 0:
            if q == 4:
                pre += f"s_mov_b32 {sAB}, {sUBS}\n"
            else:
                pre += f"s_xor_b32 {sAB}, {sWV}, {q}\ns_lshl2_add_u32 {sAB}, {sK3}, {sAB}\ns_mul_i32 {sAB}, {sAB}, {US}\ns_add_u32 {sAB}, {sAB}, {sUBM}\n"
        if i % 2 == 0:
            pre += f"s_add_u32 {sSA}, {sAB}, {sP[ii//2]}"
        slot, o = act_load(pre, sSA, 1024 * (i % 2), [it_pollU])
        mfma_item([(a3(q, nt), vr(STG + 4 * slot, 4), ar(16 * i + 4 * nt, 4), i == 0 and zero) for nt in range(4)],
                  [o], [w2rd[i]], slot, ex.get(i, []))
        if q == 2 and i == 13 - OPT["D"]:
            ops.append(pollO)
            PO["it"] = B.fn(lambda: poll_check(vPO, vPOA), needs=[pollO], cost=16, strict=True)


for q in (4, 3, 2):
    u_pass(q, {}, True)
B.fn(lambda: stamp(17), cost=0, strict=True)
for hd in range(4):
    for nt in range(4):
        slot, o = act_load(f"s_add_u32 {sSA}, {sSOo}, {nt*16384}", sSA, 1024 * hd, [PO["it"]])
        lst = [(a3(q, nt), ar(224 + 16 * (hd % 2) + 4 * q, 4), vr(STG + 4 * slot, 4), hd == 0 and q < 2) for q in range(4)]
        lst.append((a3(4, nt), vr(SF + 4 * hd, 4), vr(STG + 4 * slot, 4), False))
        m = mfma_item(lst, [o], [word[hd], strip_rd], slot)
    if hd < 2:
        word[hd + 2].first.after.append(m)
B.fn(lambda: stamp(18), cost=0, strict=True)
w_ = [lambda nt=nt: e(f"ds_write_b128 v{WS_}, {vr(a3(4,nt),4)} offset:{nt*1024}") for nt in range(4)]
w_ += [wr_main(q, nt) for q in (3, 2) for nt in range(4)]
u_pass(1, spread(w_, 14, 2), False)
ex = {i: [] for i in range(14)}
for nt in range(4):
    ex[1 + nt // 2].append(wr_main(1, nt))
ex[5].append(lambda: (e.wait_lg(S["ow"]), e("s_barrier")))
EB = 48
rd_, ad_ = [], []
for p in range(4):
    rd_.append(lambda p=p: S.__setitem__("sr", e(f"ds_read_b128 {vr(160+4*p,4)}, v{RS_} offset:{p*4096}")))
ad_.append(lambda: e.wait_lg(S["sr"]))
for p in range(4):
    for k in range(4):
        ad_.append(L(f"v_add_f32 v{RSS+k}, v{RSS+k}, v{160+4*p+k}"))
ad_.append(L(f"v_cvt_pk_bf16_f32 v{XRS}, v{RSS}, v{RSS+1}\nv_cvt_pk_bf16_f32 v{XRS+1}, v{RSS+2}, v{RSS+3}"))
for it_ in range(2):
    for rd in range(2):
        for p in range(1, 4):
            rd_.append(lambda it_=it_, rd=rd, p=p: S.__setitem__(("er", it_, rd), e(f"ds_read_b128 {vr(EB+24*it_+12*rd+4*(p-1),4)}, v{RA+2*p+rd} offset:{it_*32768}")))
        ad_.append(lambda it_=it_, rd=rd: e.wait_lg(S["er", it_, rd]))
        for p in range(3):
            for k in range(4):
                ad_.append(L(f"v_add_f32 v{RES+8*it_+4*rd+k}, v{RES+8*it_+4*rd+k}, v{EB+24*it_+12*rd+4*p+k}"))
for i, l in spread(rd_, 9, 6).items(): ex[i] += l
NAD = 40
for i, l in spread(ad_[:NAD], 14, 9).items(): ex[i] += l
u_pass(0, ex, False)
B.run()
stamp(8)
for f in ad_[NAD:NAD + 8]:
    f()
for nt in range(4):
    wr_main(0, nt)()
e(f"buffer_store_dwordx2 {vr(XRS,2)}, {vOS}, {srd(SOUT)}, {sOUTS} offen{POL}")
for f in ad_[NAD + 8:]:
    f()
e.wait_lg(S["ow"])
e("s_barrier")
rs = {}
for it_ in range(2):
    for rd in range(2):
        rs[it_, rd] = e(f"ds_read_b128 {vr(160+8*it_+4*rd,4)}, v{RA+rd} offset:{it_*32768}")
for it_ in range(2):
    e.wait_lg(rs[it_, 1])
    for k in range(4):
        e(f"v_pk_add_f32 {vr(RES+8*it_+2*k,2)}, {vr(RES+8*it_+2*k,2)}, {vr(160+8*it_+2*k,2)}")
    for k in range(4):
        e(f"v_cvt_pk_bf16_f32 v{XRES+4*it_+k}, v{RES+8*it_+2*k}, v{RES+8*it_+2*k+1}")
    e(f"buffer_store_dwordx4 {vr(XRES+4*it_,4)}, {vOA}, {srd(SOUT)}, {[sOUTO, sOUTO2][it_]} offen{POL}")
stamp(9)
stamp_flush()
e.label("L_end")
e("s_endpgm")

e.label("L_role_a")
d0 = e.vm - VM0[0]
x0, x1 = x0 + d0, x1 + d0
e.vm_done = VM0[1] + d0
e.lg_done = e.lg
A = Sched()
sHG, sTB, sNIT, sRK, sIT = "s48", "s49", "s50", "s51", "s65"
sXK = ["s68", "s69", "s70", "s71"]
sXT, sXM, sOS, sTW, sTO, sW2K, sSC = "s72", "s73", "s74", "s75", "s67", "s90", "s91"
mP, mC0, mC1, mHI, mI0, mI1, mF0 = [f"s[{76+2*i}:{77+2*i}]" for i in range(7)]
aG, aR, aC, aS, aHI = "v112", "v113", "v114", "v115", "v116"
vWD, vXD, vXA, vTW = "v2", "v3", "v4", "v5"
vWT = [["v6", "v7", "v8", "v9"], ["v10", "v11", "v12", "v13"], ["v120", "v121", "v122", "v123"]]
vMK = ["v14", "v15", "v16", "v17"]
vNEG, vFA, vTO, vXB = "v18", "v19", "v20", "v25"
AC, XFR = 96, 120


def wreg(i, j, k=0, n=4):
    r = (i * 6 + j) * 4 + k
    return ar(r, n) if r < 256 else vr(176 + r - 256, n)


it_aset = A.txt(lane_fields(aG, aR, aC, aS, aHI) + f"""s_lshr_b32 {sHG}, {sXCD}, 1
s_and_b32 {sT0}, {sXCD}, 1
s_lshl3_add_u32 {sTB}, {sT0}, {sJ}
s_sub_u32 {sTB}, {sTB}, 25
s_lshl_b32 {sW2K}, {sWV}, 11
s_and_b32 {sT0}, {sWV}, 1
s_lshl_b32 {sT0}, {sT0}, 1
v_lshlrev_b32 v117, 2, {aG}
v_sub_u32 v117, {aS}, v117
v_and_b32 v117, 15, v117
v_xor_b32 v117, {sT0}, v117
v_mul_u32_u24 {vWD}, 2688, {aG}
v_lshl_add_u32 {vWD}, v117, 4, {vWD}
s_mul_i32 {sT0}, {sWV}, {8*2688}
s_mul_i32 {sT1}, {sHG}, 224
s_andn2_b32 {sT1}, {sT1}, 63
s_add_u32 {sT0}, {sT0}, {sT1}
v_add_u32 {vWD}, {sT0}, {vWD}""", atomic=True)
STAGES = [(sec, ks) for sec in (1, 2, 0) for ks in range(14)]


def wslot(c):
    if c in (4, 5):
        return 2, (c - 4) * 24576, (c - 4) * 24576
    k = c if c < 4 else (c - 6) % 4
    return k // 2, (k % 2) * 24576, 65536 + k * 24576


def w_batch(c, after):
    r = []
    for n in range(3):
        sec, ks = STAGES[3 * c + n]
        for p in range(2):
            def f(n=n, p=p, sec=sec, ks=ks):
                if p == 0:
                    e(f"s_add_u32 m0, {sW2K}, {wslot(c)[2] + n * 8192}")
                e(f"s_mov_b32 {sSO}, {ks*32*2688 + sec*896 + p*(4*2688-1024)}")
                return e(f"buffer_load_dwordx4 {vWD}, {srd(SW)}, {sSO} offen offset:{1024*p} lds")
            r.append(Op(f, after))
    return r


wb = {c: w_batch(c, [it_aset]) for c in range(6)}
for c in range(6):
    A.ops += wb[c]
it_lpa = layernorm(A, 49152, A.ops[:OPT["n1a"]], aG, aR, aC, aS, OPT["lDa"], own_pub=False)
SC = (28 ** -0.5) * math.log2(math.e)
t = f"""v_and_b32 v117, 1, {aG}
v_lshlrev_b32 v117, 5, v117
s_mul_i32 {sT0}, {sWV}, 56
s_and_b32 {sT1}, {sHG}, 1
s_lshl_b32 {sT1}, {sT1}, 5
s_add_u32 {sT0}, {sT0}, {sT1}
v_lshlrev_b32 v118, 11, {aG}
v_lshl_add_u32 v118, {aR}, 8, v118
v_add_u32 v118, 65536, v118
"""
for ty, (sh, add) in enumerate(((3, 0), (3, 32), (4, 0), (4, 8))):
    t += f"v_lshl_add_u32 v119, {aC}, {sh}, {sT0}\nv_add_u32 v119, {add}, v119\nv_xor_b32 v119, v119, v117\n"
    t += f"v_lshl_add_u32 v119, {aR}, 6, v119\nv_and_b32 v119, 255, v119\n"
    t += f"v_add_u32 {vWT[0][ty]}, v118, v119\nv_add_u32 {vWT[1][ty]}, 49152, {vWT[0][ty]}\nv_subrev_u32 {vWT[2][ty]}, 65536, {vWT[0][ty]}\n"
it_wt = Item(lambda t=t: e(t), cost=120)
A.items.insert(2, it_wt)
A.txt(f"""v_lshrrev_b32 v117, 2, {vLANE}
v_lshrrev_b32 v119, 3, {vLANE}
v_mul_u32_u24 {vXD}, 896, v119
v_xor_b32 v118, v119, {vLANE}
v_and_b32 v118, 6, v118
v_and_or_b32 v118, {vLANE}, 1, v118
v_lshl_add_u32 {vXD}, v118, 4, {vXD}
v_and_b32 v118, 6, {vLANE}
v_xor_b32 v118, v118, {aG}
v_lshlrev_b32 {vXA}, 7, {aS}
v_lshl_add_u32 {vXA}, v118, 4, {vXA}
v_xor_b32 {vXB}, 64, {vXA}
v_lshlrev_b32 {vTW}, 12, v117
v_lshl_add_u32 {vTW}, {aC}, 7, {vTW}
v_lshlrev_b32 {vTO}, 7, {vLANE}
s_mul_i32 {sT0}, {sTB}, 18
s_sub_u32 {sT0}, {sT0}, 2
v_min_u32 v117, 19, {vLANE}
v_add_u32 v117, {sT0}, v117
v_max_i32 v117, 0, v117
v_min_i32 v117, 255, v117
v_lshlrev_b32 {vFA}, {FS}, v117
v_add_u32 {vFA}, {FLL}, {vFA}
v_and_b32 v117, 1, {aS}
v_cmp_eq_u32 {mP}, 1, v117
v_lshl_add_u32 v117, {aG}, 2, v117
v_cmp_le_u32 {mC0}, v117, {aS}
v_add_u32 v117, 2, v117
v_cmp_le_u32 {mC1}, v117, {aS}
v_cmp_eq_u32 {mHI}, 3, {aG}
v_mov_b32 v117, 0xffff
v_mov_b32 v118, 0xffff0000
v_cndmask_b32 v117, v117, v118, {mP}
v_cndmask_b32 {vMK[0]}, v117, 0, {mC0}
v_cndmask_b32 {vMK[1]}, v117, 0, {mC1}
v_cndmask_b32 {vMK[2]}, 0, v117, {mC0}
v_cndmask_b32 {vMK[3]}, 0, v117, {mC1}
s_mov_b32 {sSC}, {f32(SC)}
v_mov_b32 {vNEG}, {f32(-1e30)}
s_mul_i32 {sT0}, {sTB}, 9
s_sub_u32 {sNIT}, 129, {sT0}
s_min_u32 {sNIT}, {sNIT}, 10
s_mul_i32 {sXT}, {sT0}, 14336
s_add_u32 {sXT}, {sXT}, {XF}
s_lshl_b32 {sOS}, {sT0}, 14
s_lshl2_add_u32 {sT1}, {sHG}, {sWV}
s_lshl_b32 {sT1}, {sT1}, 10
s_add_u32 {sOS}, {sOS}, {sT1}
s_add_u32 {sOS}, {sOS}, {OF - 16384}""")
t = ""
for q in range(4):
    t += f"s_lshl2_add_u32 {sT0}, {sWV}, {q}\ns_lshl_b32 {sT1}, {sWV}, 8\ns_add_u32 {sT1}, {sT1}, {(q%2)*8*896 + (q//2)*128 - 1024*q}\n"
    t += f"s_cmp_lt_u32 {sT0}, 14\ns_cselect_b32 {sXK[q]}, {sT1}, {OOB}\n"
t += f"""s_and_b32 {sT0}, {sXCD}, 1
s_add_u32 {sT0}, {sT0}, {sJ}
s_sub_u32 {sT0}, {sT0}, 25
s_mul_i32 {sT1}, {sWV}, 28
s_add_u32 {sT1}, {sT1}, {sT0}
s_lshl_b32 {sTW}, {sT1}, 16
s_lshl_b32 {sT1}, {sXCD}, 9
s_add_u32 {sTW}, {sTW}, {sT1}
s_lshl2_add_u32 {sTO}, {sT0}, {sWV}
s_lshl_b32 {sTO}, {sTO}, 13
s_sub_u32 {sTO}, {sTO}, {4*28*8192}
s_cmp_lt_u32 {sT0}, 7
s_cselect_b32 {sTW}, {sTW}, {OOB}
s_cselect_b32 {sTO}, {sTO}, {OOB}
s_cmp_eq_u32 {sTB}, 0
s_cselect_b64 {mF0}, -1, 0
"""
it_lset = A.txt(t, atomic=True)


def x_dma(q, txt_pre=""):
    if txt_pre:
        e(txt_pre)
    e(f"s_add_u32 {sSO}, {sSA}, {sXK[q]}")
    return e(f"buffer_load_dwordx4 {vXD}, {srd(SWS)}, {sSO} offen offset:{1024*q} sc1 lds")


QF, KP, KC, VT, SR, PF, OR_, OP, TT = 32, 36, 40, 44, 52, 60, 64, 72, 76
def cvt(dst, j):
    return [f"v_cvt_pk_bf16_f32 v{dst}, v{AC+4*j}, v{AC+4*j+1}", f"v_cvt_pk_bf16_f32 v{dst+1}, v{AC+4*j+2}, v{AC+4*j+3}"]
def msk(r):
    return [f"v_cndmask_b32 v{r}, v{r}, 0, {mHI}", f"v_cndmask_b32 v{r+1}, v{r+1}, 0, {mHI}"]
def chain_mfma(j, i):
    w_, x_ = wreg(i, j), vr(XFR + 4 * i, 4)
    a_, b_ = (w_, x_) if j < 4 else (x_, w_)
    return f"v_mfma_f32_16x16x32_bf16 {vr(AC+4*j,4)}, {a_}, {b_}, {'0' if i == 0 else vr(AC+4*j,4)}"


pollA = Op(lambda: e(poll_txt("v21", vFA)), [it_lset], cost=16)
it_pollA = Item(lambda: (poll_check("v21", vFA), stamp(10)), needs=[pollA], cost=16, D=6)
xops = []
for tl in range(4):
    for q in range(4):
        pre = ""
        if q == 0:
            pre = f"s_add_u32 m0, {sW4K}, {tl*16384}\n"
            if tl == 0:
                pre += f"s_sub_u32 {sSA}, {sXT}, 14336\ns_max_u32 {sSA}, {sSA}, {XF}"
            else:
                pre += f"s_add_u32 {sSA}, {sXT}, {(tl-1)*14336}"
        xops.append(Op(lambda q=q, pre=pre: x_dma(q, pre), [it_pollA]))
XS = {}
early = []
def xread(tl, i):
    return lambda: XS.__setitem__(i, e(f"ds_read_b128 {vr(XFR+4*i,4)}, {[vXA, vXB][i%2]} offset:{tl*16384+2048*(i//2)}"))
for tl in range(2):
    for n, j in enumerate((2, 3, 4, 5)):
        for i in range(14):
            ex = []
            sl = 14 * n + i
            kd = KP if tl == 0 else KC
            if sl == 22: ex += [L(x) for x in cvt(kd, 2)]
            if sl == 36: ex += [L(x) for x in cvt(kd + 2, 3)]
            if sl == 37: ex += [L(x) for x in msk(kd + 2)]
            if tl == 0 and sl == 50: ex += [L(x) for x in cvt(VT, 4)]
            if tl == 1 and sl == 8: ex += [L(x) for x in cvt(VT + 4, 5)]
            if tl == 0 and n == 3: ex.append(xread(1, i))
            def f(j=j, i=i, ex=ex, n=n):
                if n == 0:
                    e.wait_lg(XS[i])
                e(chain_mfma(j, i))
                for x in ex:
                    x()
            early.append(Item(f, cost=16))
RS, BAR = {}, {}
XP_ = OPT["xpos"]
for c in range(14):
    def f(c=c):
        if c:
            e.wait_lg(RS[c - 1])
        e("s_barrier")
    AP = OPT["apre"]
    needs = list(wb[c]) + (xops[:8] if c == AP else [])
    b_ = A.fn(f, needs=needs, D=OPT["Da"], cost=16)
    if OPT["stamps"] > 1 and c % 2 == 0:
        A.fn(lambda c=c: stamp(22 + c // 2), cost=0)
    BAR[c] = b_
    nb = c + 5 if 1 <= c <= 4 else c + 3 if 7 <= c <= 10 else None
    if nb is not None:
        wb[nb] = w_batch(nb, [b_])
        if nb == XP_:
            A.ops.append(pollA)
        A.ops += wb[nb]
        if nb == XP_:
            A.ops += xops[:8]
    seg, off, _ = wslot(c)
    for n in range(3):
        sec, ks = STAGES[3 * c + n]
        def g(c=c, n=n, seg=seg, off=off, sec=sec, ks=ks):
            for T_ in range(2):
                for rd in range(2):
                    RS[c] = e(f"ds_read_b64_tr_b16 {wreg(ks, 2*sec+T_, 2*rd, 2)}, {vWT[seg][2*(sec//2)+T_]} offset:{off+n*8192+rd*1024}")
        A.fn(g, cost=16)
    if c == XP_ - 2:
        A.items.append(it_pollA)
    if c == AP:
        A.fn(lambda: [xread(0, i)() for i in range(14)], cost=56)
    if c >= AP:
        k = 24 if c < 13 else 112
        A.items += early[:k]
        early = early[k:]
A.ops += xops[8:]
xops[0].after.append(BAR[6])
def enter():
    e(f"s_mov_b32 {sIT}, 1\ns_mov_b32 {sXM}, {sW4K}\ns_add_u32 {sXT}, {sXT}, {3*14336}\nv_add_u32 {vXA}, 16384, {vXA}")
    e.wait(vm=xops[11].seq, lg=e.lg - 1)
    stamp(19)
    e("s_branch L_a_entry")
A.fn(enter, issued=xops, cost=16)
A.run()

slots = {i: [] for i in range(84)}
def put(first, lst, per=1, tail=False):
    i = first
    for k in range(0, len(lst), per):
        slots[i] += [(x, tail) for x in lst[k:k + per]]
        i += 1
    return i
T0, T1, T2, T3 = [f"v{TT+k}" for k in range(4)]
put(0, [f"s_cmp_eq_u32 {sIT}, 2\ns_cselect_b64 {mI0}, {mF0}, 0", f"s_andn2_b64 {mI1}, {mI0}, {mC1}\ns_andn2_b64 {mI0}, {mI0}, {mC0}"], tail=True)
put(4, cvt(QF + 2, 1) + msk(QF + 2), 2, tail=True)
put(7, [f"v_mfma_f32_16x16x32_bf16 {vr(SR,4)}, {vr(KP,4)}, {vr(QF,4)}, 0",
        f"v_mfma_f32_16x16x32_bf16 {vr(SR+4,4)}, {vr(KC,4)}, {vr(QF,4)}, 0"], tail=True)
put(9, [f"v_mov_b32 v{KP+k}, v{KC+k}" for k in range(4)])
sm = [f"v_cndmask_b32 {T0}, v{SR}, v{SR+1}, {mP}", f"v_cndmask_b32 {T1}, v{SR+2}, v{SR+3}, {mP}",
      f"v_cndmask_b32 {T2}, v{SR+4}, v{SR+5}, {mP}", f"v_cndmask_b32 {T3}, v{SR+6}, v{SR+7}, {mP}",
      f"v_cndmask_b32 {T0}, {T0}, {T2}, {mC0}", f"v_cndmask_b32 {T1}, {T1}, {T3}, {mC1}"]
sm += [f"v_cndmask_b32 {T0}, {T0}, {vNEG}, {mI0}", f"v_cndmask_b32 {T1}, {T1}, {vNEG}, {mI1}", f"v_max_f32 {T2}, {T0}, {T1}"]
def xred(op):
    r = []
    for sw in ("v_permlane16_swap_b32", "v_permlane32_swap_b32"):
        r += [f"v_mov_b32 {T3}, {T2}", None, f"{sw} {T2}, {T3}", f"{op} {T2}, {T2}, {T3}"]
    return r
sm += xred("v_max_f32")
sm += [f"v_sub_f32 {T0}, {T0}, {T2}\nv_sub_f32 {T1}, {T1}, {T2}", f"v_mul_f32 {T0}, {sSC}, {T0}\nv_mul_f32 {T1}, {sSC}, {T1}",
       f"v_exp_f32 {T0}, {T0}", f"v_exp_f32 {T1}, {T1}", f"v_add_f32 {T2}, {T0}, {T1}"]
sm += xred("v_add_f32")
sm += [f"v_rcp_f32 {T2}, {T2}", f"v_mul_f32 {T0}, {T0}, {T2}\nv_mul_f32 {T1}, {T1}, {T2}",
       f"v_cvt_pk_bf16_f32 {T0}, {T0}, {T0}\nv_cvt_pk_bf16_f32 {T1}, {T1}, {T1}",
       f"v_and_b32 v{PF}, {T0}, {vMK[0]}\nv_and_b32 v{PF+1}, {T1}, {vMK[1]}",
       f"v_and_b32 v{PF+2}, {T0}, {vMK[2]}\nv_and_b32 v{PF+3}, {T1}, {vMK[3]}", None]
sm += [f"v_mfma_f32_16x16x32_bf16 {vr(OR_+4*T_,4)}, {vr(VT+4*T_,4)}, {vr(PF,4)}, 0" for T_ in range(2)]
n_ = put(13, sm, tail=True)
n_ = put(n_, [f"v_mov_b32 v{VT+4*T_+k}, v{VT+4*T_+2+k}" for T_ in range(2) for k in range(2)])
assert n_ <= 56, n_
put(19, cvt(KC, 2))
put(36, cvt(KC + 2, 3) + msk(KC + 2))
pv = [f"s_cmp_lt_u32 {sIT}, 2\ns_cselect_b32 {sT0}, {OOB}, {sOS}"]
pv += [f"v_cvt_pk_bf16_f32 v{OP+k}, v{OR_+2*k}, v{OR_+2*k+1}" for k in range(4)] + msk(OP + 2)
pv += [f"buffer_store_dwordx4 {vr(OP,4)}, {vL16}, {srd(SWS)}, {sT0} offen sc1"]
n_ = put(56, pv, tail=True)
n_ = put(n_, cvt(VT + 2, 4) + cvt(VT + 6, 5))
assert n_ <= 69
put(75, cvt(QF, 0))
put(57, [f"s_add_u32 {sOS}, {sOS}, 16384", f"v_add_u32 {vXA}, 16384, {vXA}", f"v_and_b32 {vXA}, 0xffff, {vXA}", f"v_xor_b32 {vXB}, 64, {vXA}"])
put(2, [f"s_mov_b32 m0, {sXM}"])
NT = 0
for q, pos in enumerate((2, 22, 26, 47)):
    put(pos, [f"s_add_u32 {sSO}, {sXT}, {sXK[q]}"])
    if not OPT["xa"] & 2:
        put(pos + 1, [f"buffer_load_dwordx4 {vXD}, {srd(SWS)}, {sSO} offen offset:{1024*q} sc1 lds"])
put(51, [f"s_add_u32 {sXT}, {sXT}, 14336", f"s_add_u32 {sXM}, {sXM}, 16384", f"s_and_b32 {sXM}, {sXM}, 0xffff"])
if OPT["tw2"]:
    put(77, [f"s_cmp_lt_u32 {sIT}, 5\ns_cselect_b32 {sT1}, {sTW}, {OOB}", f"buffer_load_dword v21, {vTW}, {srd(SW2)}, {sT1} offen",
             f"s_add_u32 {sTW}, {sTW}, {7*65536}"])
    NT += 1
if OPT["two"]:
    put(80, [f"s_min_u32 {sT1}, {sTO}, {OOB}", f"s_add_u32 {sTO}, {sTO}, {28*8192}", f"buffer_load_dword v22, {vTO}, {srd(SWO)}, {sT1} offen"])
    NT += 1
put(69, [f"s_waitcnt vmcnt({6+NT})" + ("" if OPT["xa"] & 1 else "\ns_barrier")])
for i in range(14):
    slots[70 + i].insert(0, (f"ds_read_b128 {vr(XFR+4*i,4)}, {[vXA, vXB][i%2]} offset:{2048*(i//2)}", False))
def raw(t):
    for l in t.split("\n"):
        e.lines.append("    " + l)
e.label("L_a_loop")
for sl in range(84):
    j, i = (2, 3, 4, 5, 0, 1)[sl // 14], sl % 14
    if sl == 56:
        e.label("L_a_entry")
    if sl < 14 and sl % OPT["wst"] == 0:
        raw(f"s_waitcnt lgkmcnt({13 - min(13, sl + OPT['wst'] - 1)})")
    raw(chain_mfma(j, i))
    for x, _ in slots[sl]:
        if x:
            raw(x)
raw(f"s_add_u32 {sIT}, {sIT}, 1\ns_cmp_lt_u32 {sIT}, {sNIT}\ns_cbranch_scc1 L_a_loop")
stamp(20)
for sl in range(84):
    for x, wrapped in slots[sl]:
        if x and wrapped:
            raw(x)
e.wait_all(force=True)
e("s_barrier")
publish(flagcalc(sHG, 4, sTB, FLO))
stamp(11)
stamp_flush()
e("s_endpgm")
e.label("L_codeend")

body, nn = pad_hazards(e.lines)
ref = open(os.path.join(os.path.dirname(os.path.abspath(__file__)), "..", NAME + ".s.ref")).read().split("\n")
hdr = [l for l in ref if l.startswith(";") and "@launch" not in l and not l.startswith("; Override") and not l.startswith("; grid=ceil")]
out = hdr + ["; @launch grid=(256,1,1) block=(256,1,1) lds=163840",
             "; generated by tools/gen4.py (hand-written generator); options: " + " ".join(f"{k}={v}" for k, v in OPT.items()),
             '.amdgcn_target "amdgcn-amd-amdhsa--gfx950"', ".text", f".globl {NAME}_kernel", ".p2align 8",
             f".type {NAME}_kernel,@function", f"{NAME}_kernel:"] + body + [
    '.section .rodata,"a"', ".p2align 6", f".amdhsa_kernel {NAME}_kernel",
    "  .amdhsa_next_free_vgpr 512", "  .amdhsa_next_free_sgpr 102", "  .amdhsa_accum_offset 256",
    "  .amdhsa_group_segment_fixed_size 0", "  .amdhsa_kernarg_size 88", "  .amdhsa_user_sgpr_count 2",
    "  .amdhsa_user_sgpr_kernarg_segment_ptr 1", "  .amdhsa_system_sgpr_workgroup_id_x 1",
    "  .amdhsa_float_denorm_mode_32 3", ".end_amdhsa_kernel", ""]
open(sys.argv[1], "w").write("\n".join(out))
print(f"wrote {sys.argv[1]}: {len(body)} lines, {nn} s_nop pads")
```

```python
HDR = """; @launch grid=({grid},1,1) block=({block},1,1) lds={lds}
.amdgcn_target "amdgcn-amd-amdhsa--gfx950"
.text
.globl t_kernel
.p2align 8
.type t_kernel,@function
t_kernel:
    s_load_dwordx4 s[4:7], s[0:1], 0
    s_waitcnt lgkmcnt(0)
    s_mov_b32 s8, s4
    s_mov_b32 s9, s5
    s_mov_b32 s10, 0x100000
    s_mov_b32 s11, 0x20000
    s_mov_b32 s12, s6
    s_mov_b32 s13, s7
    s_mov_b32 s14, 0x4000000
    s_mov_b32 s15, 0x20000
"""
FTR = """
    s_endpgm
.section .rodata,"a"
.p2align 6
.amdhsa_kernel t_kernel
  .amdhsa_next_free_vgpr 512
  .amdhsa_next_free_sgpr 102
  .amdhsa_accum_offset 256
  .amdhsa_group_segment_fixed_size 0
  .amdhsa_kernarg_size 16
  .amdhsa_user_sgpr_count 2
  .amdhsa_user_sgpr_kernarg_segment_ptr 1
  .amdhsa_system_sgpr_workgroup_id_x 1
.end_amdhsa_kernel
"""
def out_stamps(n):
    s = "    s_waitcnt lgkmcnt(0)\n    v_lshrrev_b32 v4, 6, v0\n    s_lshl_b32 s3, s2, 2\n    v_add_u32 v4, s3, v4\n    v_lshlrev_b32 v4, 6, v4\n"
    for i in range(n-1):
        s += f"    s_sub_u32 s16, s{22+2*i}, s{20+2*i}\n    v_mov_b32 v2, s16\n    buffer_store_dword v2, v4, s[8:11], 0 offen offset:{4*i}\n"
    return s
def stamp(i): return f"    s_memtime s[{20+2*i}:{21+2*i}]\n    s_waitcnt lgkmcnt(0)\n"

body = ""
tests = [
 "v_dot2_f32_bf16 v{d}, v10, v11, v{d}",
 "v_dot2c_f32_bf16 v{d}, v10, v11",
 "v_pk_fma_f32 v[{d2}:{d2p}], v[10:11], v[12:13], v[14:15]",
 "v_pk_mul_f32 v[{d2}:{d2p}], v[10:11], v[12:13]",
 "v_cvt_pk_bf16_f32 v{d}, v10, v11",
 "v_fma_f32 v{d}, v10, v11, v12",
 "v_lshlrev_b32 v{d}, 16, v10",
 "v_exp_f32 v{d}, v10",
 "v_dot2_f32_bf16 v20, v10, v11, v20",
]
for rep in range(2):
  body = ""
  for i, t in enumerate(tests):
    body += stamp(i)
    for k in range(128):
        d = 20 + (k % 8); d2 = 20 + 2*(k % 8)
        body += "    " + t.format(d=d, d2=d2, d2p=d2+1) + "\n"
  body += stamp(len(tests))
s = HDR.format(grid=1, block=64, lds=0) + "    s_mov_b32 s60, 0\nL1:\n" + body + "    s_add_u32 s60, s60, 1\n    s_cmp_lt_u32 s60, 2\n    s_cbranch_scc1 L1\n" + out_stamps(len(tests)+1) + FTR
open("mb_valu.s", "w").write(s)

body = """
    v_lshlrev_b32 v1, 4, v0
    s_lshl_b32 s3, s2, 14
    v_add_u32 v5, s3, v1
    v_add_u32 v5, 0x1000000, v5
    buffer_load_dwordx4 v[8:11], v1, s[12:15], 0 offen
    s_waitcnt vmcnt(0)
    buffer_load_dwordx4 v[8:11], v1, s[12:15], 0 offen
    s_waitcnt vmcnt(0)
""" + stamp(0) + """
    buffer_load_dwordx4 v[8:11], v1, s[12:15], 0 offen
    s_waitcnt vmcnt(0)
""" + stamp(1) + """
    buffer_store_dwordx4 v[8:11], v5, s[12:15], 0 offen sc1
    s_waitcnt vmcnt(0)
""" + stamp(2) + """
    buffer_store_dwordx4 v[8:11], v5, s[12:15], 0 offen offset:1024 sc1
    buffer_load_dwordx4 v[12:15], v1, s[12:15], 0 offen
    s_waitcnt vmcnt(1)
""" + stamp(3) + """
    s_waitcnt vmcnt(0)
""" + stamp(4) + """
    buffer_store_dwordx4 v[8:11], v5, s[12:15], 0 offen offset:2048
    s_waitcnt vmcnt(0)
""" + stamp(5) + """
    buffer_store_dwordx4 v[8:11], v5, s[12:15], 0 offen offset:3072 sc0 sc1
    s_waitcnt vmcnt(0)
""" + stamp(6) + """
    buffer_load_dwordx4 v[12:15], v1, s[12:15], 0 offen sc1
    s_waitcnt vmcnt(0)
""" + stamp(7) + """
    buffer_load_dwordx4 v[12:15], v5, s[12:15], 0 offen sc1
    s_waitcnt vmcnt(0)
""" + stamp(8) + """
    buffer_load_dwordx4 v[12:15], v5, s[12:15], 0 offen sc1
    s_waitcnt vmcnt(0)
""" + stamp(9)
s = HDR.format(grid=8, block=64, lds=0) + body + out_stamps(10) + FTR
open("mb_order.s", "w").write(s)

def bwtest(ld, vstride_shift, step, nbytes_mask):
    b = f"""
    v_and_b32 v1, 63, v0
    v_lshlrev_b32 v1, {vstride_shift}, v1
    v_lshrrev_b32 v2, 6, v0
    s_nop 0
    v_readfirstlane_b32 s61, v2
    s_lshr_b32 s62, s2, 3
    s_lshl_b32 s62, s62, 2
    s_add_u32 s61, s61, s62
    s_mul_i32 s61, s61, {step*16}
    s_mov_b32 s60, 0
    s_mov_b32 m0, 0
"""
    return b
def loop(lbl, ld, step):
    b = f"{lbl}:\n"
    for k in range(16):
        b += f"    s_add_u32 s61, s61, {step}\n    s_and_b32 s61, s61, 0xfffff\n"
        b += "    " + ld.format(d=16+4*k, d3=19+4*k) + "\n"
    b += f"    s_add_u32 s61, s61, {step*48}\n"
    b += f"    s_waitcnt vmcnt(16)\n    s_add_u32 s60, s60, 1\n    s_cmp_lt_u32 s60, 32\n    s_cbranch_scc1 {lbl}\n    s_waitcnt vmcnt(0)\n    s_barrier\n"
    return b
variants = [
  ("buffer_load_dwordx4 v[{d}:{d3}], v1, s[12:15], s61 offen", 4, 1024),
  ("buffer_load_dwordx4 v[{d}:{d3}], v1, s[12:15], s61 offen", 4, 1024),
  ("buffer_load_dwordx4 v[{d}:{d3}], v1, s[12:15], s61 offen sc1", 4, 1024),
  ("buffer_load_dwordx4 a[{d}:{d3}], v1, s[12:15], s61 offen sc1", 4, 1024),
  ("buffer_load_dwordx4 v1, s[12:15], s61 offen lds", 4, 1024),
  ("buffer_load_dwordx4 v[{d}:{d3}], v1, s[12:15], s61 offen nt", 4, 1024),
  ("buffer_load_dword v{d}, v1, s[12:15], s61 offen", 7, 8192),
  ("buffer_load_dword v{d}, v1, s[12:15], s61 offen sc1", 7, 8192),
  ("buffer_load_dword v{d}, v1, s[12:15], s61 offen nt", 7, 8192),
  ("buffer_load_dword v{d}, v1, s[12:15], s61 offen sc0 sc1", 7, 8192),
  ("buffer_load_dword v{d}, v1, s[12:15], s61 offen", 2, 256),
  ("buffer_load_dwordx2 v[{d}:{d}+1], v1, s[12:15], s61 offen", 3, 512),
]
body = ""
for i, (ld, sh, step) in enumerate(variants):
    body += bwtest(ld, sh, step, 0) + stamp(i) + loop(f"LB{i}", ld, step)
body += stamp(len(variants))
for g in (8, 256):
    s = HDR.format(grid=g, block=256, lds=4096) + body + out_stamps(len(variants)+1) + FTR
    open(f"mb_bw{g}.s", "w").write(s)
```

```python
from gen_mb1 import HDR, FTR
def mk(name, warm):
    b = "    v_mov_b32 v31, 0\n    s_getpc_b64 s[30:31]\nLP:\n    v_writelane_b32 v31, s30, 63\n"
    if warm:
        for k in range(1, 4):
            b += f"    s_add_u32 s32, s30, LS{k}-LP\n    s_addc_u32 s33, s31, 0\n    s_swappc_b64 s[34:35], s[32:33]\n"
        b += "    s_nop 15\n" * 20
    b += "    s_branch LB0\n.p2align 12\nLB0:\n"
    n = 0
    for pg in range(4):
        for blk in range(15):
            b += "    s_memtime s[20:21]\n"
            for k in range(29):
                b += "    v_mfma_f32_16x16x32_bf16 v[40:43], v[8:11], v[12:15], v[40:43]\n"
            b += f"    s_waitcnt lgkmcnt(0)\n    s_nop 0\n    v_writelane_b32 v31, s20, {n}\n"
            n += 1
        if pg < 3:
            if warm is None:
                b += "".join("    v_mfma_f32_16x16x32_bf16 v[40:43], v[8:11], v[12:15], v[40:43]\n" for _ in range(32))
            else:
                b += f"    s_branch LB{pg+1}\n.p2align 12\nLS{pg+1}:\n    s_setpc_b64 s[34:35]\nLB{pg+1}:\n"
    b += """    v_lshlrev_b32 v4, 2, v0
    s_lshl_b32 s3, s2, 10
    v_add_u32 v4, s3, v4
    buffer_store_dword v31, v4, s[8:11], 0 offen
"""
    if not warm: b = "    s_getpc_b64 s[34:35]\n" + b
    open(name, "w").write(HDR.format(grid=256, block=256, lds=100000) + b + FTR.replace("512", "64").replace("256", "64"))
mk("mb_pg_lin.s", None); mk("mb_pg_jmp.s", False); mk("mb_pg_warm.s", True)
```
